```python
import torch

def _softmax(x, axis=-1):
    return torch.softmax(x, dim=axis)
def _gelu(x):
    return torch.nn.functional.gelu(x, approximate="tanh")
def _silu(x):
    return torch.nn.functional.silu(x)
def _sigmoid(x):
    return torch.sigmoid(x)
def _layernorm(x, axis=-1, eps=1e-5):
    m = x.mean(dim=axis, keepdim=True)
    v = x.var(dim=axis, keepdim=True, unbiased=False)
    return (x - m) / torch.sqrt(v + eps)
def _scatter_add(tgt, idx, src, axis=0):
    return tgt.clone().index_add_(axis, idx, src)
def _segment_sum(src, seg, n):
    out = torch.zeros((n,) + src.shape[1:], dtype=src.dtype)
    return out.index_add_(0, seg, src)
def _pad(x, pw):
    flat = tuple(v for pair in reversed(pw) for v in pair)
    return torch.nn.functional.pad(x, flat)

kernel_name = 'standalone__low_rank_proj_linformer__decode'

def setup_inputs():

    _w = (lambda a: (lambda t: t.to(torch.bfloat16) if t.is_floating_point() else t)(torch.as_tensor(a)))
    B, H, Sq, Skv, Dh, R = 2, 32, 1, 16384, 128, 64
    return {
        "q": _w((lambda *s: torch.randn(*s, dtype=torch.bfloat16) * 0.8)(B, H, Sq, Dh)),
        "k": _w((lambda *s: torch.randn(*s, dtype=torch.bfloat16) * 0.8)(B, H, Skv, Dh)),
        "v": _w((lambda *s: torch.randn(*s, dtype=torch.bfloat16) * 0.05)(B, H, Skv, Dh)),
        "e_proj": _w((lambda *s: torch.randn(*s, dtype=torch.bfloat16) * 0.8)(R, Skv) * (Skv ** -0.5)),
        "f_proj": _w((lambda *s: torch.randn(*s, dtype=torch.bfloat16) * 0.05)(R, Skv) * (Skv ** -0.5)),
    }

def reference(q, k, v, e_proj, f_proj):
    B, H, Sq, Dh = q.shape
    kp = torch.einsum("rn,bhnd->bhrd", e_proj, k)
    vp = torch.einsum("rn,bhnd->bhrd", f_proj, v)
    scores = torch.einsum("bhqd,bhrd->bhqr", q, kp) * (Dh ** -0.5)
    p = _softmax(scores, axis=-1)
    o = torch.einsum("bhqr,bhrd->bhqd", p, vp)
    return o
```

```python
import re

def regs_of(tok):
    tok = tok.strip()
    neg = tok.lstrip('-')
    m = re.fullmatch(r'([vas])\[(\d+):(\d+)\]', neg)
    if m: return [(m.group(1), i) for i in range(int(m.group(2)), int(m.group(3))+1)]
    m = re.fullmatch(r'([vas])(\d+)', neg)
    if m: return [(m.group(1), int(m.group(2)))]
    if neg == 'vcc': return [('s', 'vcc')]
    if neg == 'exec': return [('s', 'exec')]
    if neg == 'm0': return [('s', 'm0')]
    return []

TRANS = ('v_exp_f32', 'v_log_f32', 'v_rcp_f32', 'v_rsq_f32', 'v_sqrt_f32')

class Ins:
    def __init__(self, text):
        self.text = text
        t = text.split(';')[0].strip()
        parts = t.split(None, 1)
        self.op = parts[0]
        rest = parts[1] if len(parts) > 1 else ''
        ops = [o.strip() for o in rest.split(',')] if rest else []
        if ops:
            last = ops[-1].split()
            ops[-1] = last[0] if last else ''
            self.mods = ' '.join(last[1:])
        else: self.mods = ''
        self.ops = ops
        op = self.op
        self.mfma = op.startswith('v_mfma')
        self.dot = op.startswith('v_dot')
        self.valu = op.startswith('v_') and not self.mfma
        self.trans = op.split('_e32')[0] in TRANS
        self.dpp = op.endswith('_dpp')
        self.perml = op.startswith('v_permlane')
        self.rdlane = op.startswith('v_readfirstlane') or op.startswith('v_readlane')
        self.vmem = op.startswith(('buffer_', 'global_'))
        self.ds = op.startswith('ds_')
        self.salu = op.startswith('s_')
        R = [regs_of(o) for o in ops]
        self.dst, self.src, self.srcC, self.srcAB = [], [], [], []
        if self.mfma:
            self.dst = R[0]; self.srcAB = R[1] + R[2]; self.srcC = R[3]; self.src = self.srcAB + self.srcC
        elif self.perml:
            self.dst = R[0] + R[1]; self.src = R[0] + R[1]
        elif self.valu:
            self.dst = R[0]; self.src = sum(R[1:], [])
            if op.startswith(('v_fmac', 'v_dot2c', 'v_writelane')) or (self.dpp and ('bank_mask:0xf' not in self.mods or 'row_mask:0xf' not in self.mods)): self.src = self.src + R[0]
            if op.startswith('v_cndmask') and len(ops) == 3: self.src = self.src + [('s', 'vcc')]
            if self.dot and len(R) == 4: self.srcC = R[3]; self.srcAB = R[1] + R[2]
        elif self.vmem:
            isload = '_load_' in op; isatom = '_atomic_' in op
            if 'lds' in self.mods.split() or op.startswith('global_load_lds'):
                self.src = sum(R, [])
            elif isload: self.dst = R[0]; self.src = sum(R[1:], [])
            elif isatom and 'sc0' in self.mods.split():
                if op.startswith('global'): self.dst = R[0]; self.src = sum(R[1:], [])
                else: self.dst = R[0]; self.src = sum(R, [])
            else: self.src = sum(R, [])
            self.wide_store = ('_store_dwordx4' in op or '_store_dwordx3' in op)
            if self.wide_store: self.sdata = R[1] if op.startswith('global') else R[0]
        elif self.ds:
            if op.startswith(('ds_read', 'ds_bpermute', 'ds_swizzle')) or '_rtn' in op: self.dst = R[0]; self.src = sum(R[1:], [])
            else: self.src = sum(R, [])
        elif self.salu:
            if op.startswith(('s_cmp', 's_bitcmp', 's_cbranch', 's_branch', 's_waitcnt', 's_nop', 's_barrier', 's_endpgm', 's_sleep', 's_setprio')): self.src = sum(R, [])
            elif R: self.dst = R[0]; self.src = sum(R[1:], [])
        self.states = 1
        if op == 's_nop': self.states = int(ops[0]) + 1

def need_states(p, c):
    n = 0
    pd = set(p.dst)
    vd = {r for r in pd if r[0] in 'va'}
    sd = {r for r in pd if r[0] == 's'}
    cs, cd = set(c.src), set(c.dst)
    if p.valu:
        if c.mfma and vd & cs: n = max(n, 2)
        if (c.dpp or c.perml) and vd & cs: n = max(n, 2)
        if c.rdlane and vd & cs: n = max(n, 1)
        if p.trans and (c.valu or c.mfma) and vd & cs: n = max(n, 1)
        if p.dot:
            if c.op == p.op:
                if vd & set(c.srcAB): n = max(n, 3)
            elif vd & (cs | cd): n = max(n, 3)
        if sd:
            if c.valu and sd & cs: n = max(n, 4 if (c.rdlane or c.op.startswith('v_writelane')) else 2)
            if c.vmem and sd & cs: n = max(n, 5)
            if c.salu and sd & cs: n = max(n, 2)
    if p.mfma:
        if c.mfma:
            if vd & set(c.srcAB): n = max(n, 8)
            if vd & set(c.srcC) and list(p.dst) != list(c.srcC): n = max(n, 6)
            if vd & cd and not (list(p.dst) == list(c.dst) and list(c.srcC) == list(c.dst)): n = max(n, 6)
        elif (c.valu or c.vmem or c.ds) and vd & (cs | cd): n = max(n, 8)
        if c.valu and set(p.srcC) & cd: n = max(n, 3)
    if p.vmem and getattr(p, 'wide_store', False) and set(p.sdata) & cd: n = max(n, 2)
    if p.salu and ('s', 'm0') in pd and (c.vmem or c.op.startswith('v_writelane') or c.op.startswith('v_readlane')): n = max(n, 1)
    return n

class Emitter:
    def __init__(self):
        self.out = []
        self.hists = [[]]
        self.vmq = []
        self.vm_done = 0
        self.lgq = []
        self.lg_done = 0
        self.nid = 0
        self.nnops = 0
    def raw(self, s): self.out.append(s)
    def label(self, s):
        self.out.append(s + ':')
    def snapshot(self): return [list(h) for h in self.hists]
    def join(self, label, *snaps):
        self.label(label)
        for sn in snaps: self.hists += [list(h) for h in sn]
    def fence(self, n=8):
        self.I(f's_nop {n-1}');
    def I(self, text, counted=True):
        ins = Ins(text)
        pad = 0
        for h in self.hists:
            dist = 0
            for p in reversed(h):
                need = need_states(p, ins)
                if need > dist: pad = max(pad, need - dist)
                dist += p.states
                if dist >= 20: break
        if pad:
            nop = Ins(f's_nop {pad-1}'); self.out.append('    ' + nop.text); self.nnops += 1
            for h in self.hists: h.append(nop)
        for h in self.hists: h.append(ins)
        hs = []
        for h in self.hists:
            h = h[-24:]
            if not any(len(h) == len(o) and all(x is y for x, y in zip(h, o)) for o in hs): hs.append(h)
        self.hists = hs
        self.out.append('    ' + text)
        if ins.vmem and not ins.op.startswith(('buffer_wbl2', 'buffer_inv')):
            self.nid += 1
            self.vmq.append((self.nid, counted)); return self.nid
        if ins.ds:
            self.nid += 1
            self.lgq.append((self.nid, counted)); return self.nid
        return None
    def _wait(self, q, done, ids):
        pos = max(i for i, (x, _) in enumerate(q) if x in ids)
        if pos < done: return None, done
        n = sum(1 for (x, c) in q[pos+1:] if c)
        return n, pos + 1
    def wait_vm(self, *ids, cond=False):
        ids = {i for i in ids if i is not None}
        if not ids: return
        n, d = self._wait(self.vmq, self.vm_done, ids)
        if n is None: return
        assert n <= 63, n
        self.I(f's_waitcnt vmcnt({n})')
        if not cond: self.vm_done = d
    def wait_lg(self, *ids, cond=False):
        ids = {i for i in ids if i is not None}
        if not ids: return
        n, d = self._wait(self.lgq, self.lg_done, ids)
        if n is None: return
        n = min(n, 15)
        self.I(f's_waitcnt lgkmcnt({n})')
        if not cond: self.lg_done = d
    def text(self): return '\n'.join(self.out) + '\n'
```

```python
import sys, math, struct
from asmlib import Emitter
KN = "standalone__low_rank_proj_linformer__decode_kernel"
HEADER = open('standalone__low_rank_proj_linformer__decode.s.ref').read().split('; Override launch')[0]

DOC = """;
;
;
"""

def gen(R=6, R0=None, t0=0, R1=None, t1=512, ts=0, bgrate=8, codepf=0, kvflags="nt", efflags="", fdepth=3,
        slp=32, gslp=24, lslp=8, oslp=2, tB0=56, hperm=1, dbg=0, qfirst=0, prio=0, eb=0, er=0, tBi=2, bar=0, slp0=0, pf=0, pace=1, ldflags="sc1", stflags="sc1", Rp=0, RV=None, oflags="", lay=0, sx=0, ms="44 54", Rb=7, Rt=5, cb=6, ct=8, cl=11, tc0=328, cslp=8, ctl=1, psh=5, pre=4, edel=10, kdel=2, spf=0, pat=0, tfree=16, Rf=16, tlb=0, elds=1, edepth=3, erot=1, tE=69, wsoff=0, sb=0, ext=4, endm=61, oearly=2, erow=0, fpf=0, twhen=0, otouch=0, skew=0, pg=1, extb=0, npoll=1, pstag=4, Rb2=0, tc1=464, kk=1, kx=0, frot=1):
    e = Emitter(); I = e.I
    MS = [int(x) for x in str(ms).split()] if ctl else []
    sW=3; sQ=4; sK=6; sV=8; sE=10; sF=12; sO=14; sD=16; sWS=18
    rK=20; rV=24; rE=28; rF=28; rW=36
    sG=40; sS=41; sT=42; sT2=43; sOff=44; sOffX=46; sGa=47; sM1=48; sM0=50; sMB=52; sSl=53; sCS=54; sPoll=55; sOP=56; sOP2=57; sTs=58; sPC=60
    sOS=32; sGa2=33
    PSZ=576; HSZ=2*PSZ; WSZ=4*HSZ; SC=4*WSZ; OB=SC+4096; PB=OB+8192; FL=PB+512; MK=FL+128; EB=31744; LDS=EB+131072 if elds else FL+128
    MBOX=0x80000; PRG=0xa0000; OPART=1<<20
    def vr(a, n=4): return f"v[{a}:{a+n-1}]"
    def ar(a, n=4): return f"v[{128+a}:{128+a+n-1}]"
    def sr(a, n=4): return f"s[{a}:{a+n-1}]"
    vKV=1; vE=2; vQ=4; vWr=5; vSCw=6; vL8=7; vOw=8; vT=9; vTS=10
    wg_=13; c_=14
    Q=16; VA=16; P=32; PK=40; SEL=44; AD=52; WR=60; KA=64; RING=96
    HS = (64 << 20) if hperm else (4 << 20)
    QS = 4096 if hperm else 256
    LK = kk.bit_length() - 1
    NREC = 3*HS + 7*32768*kk + 32768
    def slice_off(dst, tmp, unit):
        if kk == 1: I(f"s_lshl_b32 s{dst}, s{sS}, {unit+3}"); return
        if kx:
            I(f"s_and_b32 s{dst}, s{sS}, {16//kk - 1}"); I(f"s_lshl_b32 s{dst}, s{dst}, {LK+3}"); I(f"s_lshr_b32 s{tmp}, s{sS}, {4-LK}")
        else:
            I(f"s_lshr_b32 s{dst}, s{sS}, {LK}"); I(f"s_lshl_b32 s{dst}, s{dst}, {LK+3}"); I(f"s_and_b32 s{tmp}, s{sS}, {kk-1}")
        I(f"s_or_b32 s{dst}, s{dst}, s{tmp}"); I(f"s_lshl_b32 s{dst}, s{dst}, {unit}")

    e.raw(HEADER.rstrip())
    e.raw(f"; @launch grid=(256,1,1) block=(512,1,1) lds={LDS}")
    e.raw(DOC.rstrip())
    e.raw('.amdgcn_target "amdgcn-amd-amdhsa--gfx950"'); e.raw(".text"); e.raw(f".globl {KN}"); e.raw(".p2align 8")
    e.raw(f".type {KN},@function"); e.label(KN)
    I("s_cmp_ge_u32 s2, 0x100"); I("s_cbranch_scc1 L_end")
    I(f"s_load_dwordx16 s[4:19], s[0:1], 0")
    if ts: I(f"s_memrealtime s[{sTs}:{sTs+1}]")
    I(f"v_readfirstlane_b32 s{sW}, v0")
    I(f"v_lshrrev_b32 v{wg_}, 4, v0")
    I(f"v_and_b32 v{c_}, 15, v0")
    I(f"v_lshlrev_b32 v{vQ}, 4, v{c_}")
    if sx == 1: I(f"s_lshr_b32 s{sS}, s2, 4"); I(f"s_and_b32 s{sG}, s2, 15")
    elif sx == 2:
        I(f"s_and_b32 s{sS}, s2, 1"); I(f"s_lshl_b32 s{sS}, s{sS}, 3"); I(f"s_bfe_u32 s{sG}, s2, 0x30003"); I(f"s_or_b32 s{sS}, s{sS}, s{sG}")
        I(f"s_bfe_u32 s{sG}, s2, 0x20001"); I(f"s_lshr_b32 s{sT}, s2, 6"); I(f"s_lshl_b32 s{sT}, s{sT}, 2"); I(f"s_or_b32 s{sG}, s{sG}, s{sT}")
    else: I(f"s_lshr_b32 s{sG}, s2, 4"); I(f"s_and_b32 s{sS}, s2, 15")
    I(f"s_lshr_b32 s{sW}, s{sW}, 6")
    if skew:
        I(f"s_mul_i32 s{sT}, s2, 37"); I(f"s_and_b32 s{sT}, s{sT}, {skew >> 4}"); I("s_cbranch_scc1 L_nosk"); sn = e.snapshot()
        if not skew & 1: I(f"s_cmp_lt_u32 s{sW}, 4"); I("s_cbranch_scc1 L_nosk"); sn += e.snapshot()
        if not skew & 2: I(f"s_cmp_ge_u32 s{sW}, 4"); I("s_cbranch_scc1 L_nosk"); sn += e.snapshot()
        if skew & 4: I(f"s_bitcmp0_b32 s{sW}, 0"); I("s_cbranch_scc1 L_nosk"); sn += e.snapshot()
        for _ in range(12): I("s_sleep 127")
        e.join("L_nosk", sn)
    I(f"s_cmp_ge_u32 s{sW}, 4"); I("s_cbranch_scc1 L_helper")
    sn_entry = e.snapshot()
    if pat:
        I(f"v_and_b32 v{vKV}, 3, v{wg_}"); I(f"v_lshl_add_u32 v{vKV}, v{vKV}, 9, v{vQ}"); I(f"s_lshl_b32 s{sT}, s{sW}, 12"); I(f"v_add_u32 v{vKV}, s{sT}, v{vKV}")
    else: I(f"v_lshl_add_u32 v{vKV}, v{wg_}, 11, v{vQ}")
    if not elds:
        I(f"v_lshlrev_b32 v{vE}, 15, v{c_}")
        I(f"v_lshl_add_u32 v{vE}, v{wg_}, 4, v{vE}")
    slice_off(sT2, sT, 15)
    I(f"s_lshl_b32 s{sT}, s{sG}, {22 if hperm else 24}"); I(f"s_add_u32 s{sT}, s{sT}, s{sT2}")
    I(f"s_lshl_b32 s{sT2}, s{sG}, {8 if hperm else 10}")
    I(f"s_mov_b32 s{rK+2}, {hex(NREC)}"); I(f"s_mov_b32 s{rK+3}, 0x20000")
    I(f"s_mov_b32 s{sOff}, 0")
    if not elds:
        I(f"s_lshl_b32 s{sOS}, s{sS}, 11")
        I(f"s_sub_u32 s{rE+2}, 0x200000, s{sOS}"); I(f"s_mov_b32 s{rE+3}, 0x20000")
    if prio: I(f"s_setprio {prio}")
    I("s_waitcnt lgkmcnt(0)")
    if ts == 2: I("s_memrealtime s[64:65]")
    I(f"s_add_u32 s{rK}, s{sK}, s{sT}"); I(f"s_addc_u32 s{rK+1}, s{sK+1}, 0")
    pool = [('v', RING + 4*k, 0, 10**9) for k in range(8)] + [('v', SEL + 4*k, 0, 190) for k in range(0 if (kdel and not elds) else 5)] + \
           [('v', KA + 16 + 4*k, 0, 70) for k in range(4)] + [('a', 128 + 4*k, 258, 10**9) for k in range(32)]
    busy = set(); slot = {}; ldid = {}; nxt = [0]
    def issue(now):
        t = nxt[0]
        if t >= 512: return False
        cand = [p for p in pool if p not in busy and p[2] <= now and t <= p[3] and (p[0] == 'v' or t >= 256)]
        if not cand: return False
        p = cand[0]; busy.add(p); slot[t] = p; nxt[0] += 1
        ph, h, b, j = t // 256, (t // 64) % 4, (t // 8) % 8, t % 8
        if pat:
            if j % 4 == 0 and t > 0: I(f"s_mov_b32 s{sOff}, {hex(h*HS + b*32768*kk + (j//4)*16384)}")
            off = (j & 1)*256 + ((j >> 1) & 1)*2048
        else:
            if j == 0 and t > 0: I(f"s_mov_b32 s{sOff}, {hex(h*HS + b*32768*kk)}")
            off = j*256
        ldid[t] = I(f"buffer_load_dwordx4 v[{p[1]}:{p[1]+3}], v{vKV}, {sr(rV if ph else rK)}, s{sOff} offen offset:{off} {kvflags}")
        return True
    def target(t):
        if R0 is not None and t < t0: return R0
        if ctl and Rf and t >= 512 - tfree: return Rf
        if ctl and Rb2 and t >= tc1: return Rb2
        if ctl and t >= tc0: return Rb
        if R1 is not None and t >= t1: return R1
        r = RV if (RV is not None and t >= 256) else R
        return r + (1 if Rp and (t // 16) % Rp == 0 else 0)
    qid = []
    def loadq(h):
        if h == 0: I(f"s_add_u32 s{sQ}, s{sQ}, s{sT2}")
        else: I(f"s_add_u32 s{sQ}, s{sQ}, {QS}")
        I(f"s_addc_u32 s{sQ+1}, s{sQ+1}, 0")
        qid.append(I(f"global_load_dwordx4 {vr(Q+4*h)}, v{vQ}, s[{sQ}:{sQ+1}]"))
    if qfirst == 1: loadq(0)
    for k in range(target(0)):
        assert issue(0)
        if k == 0 and qfirst == 2: loadq(0)
    if qfirst == 0: loadq(0)
    if not elds: I(f"s_add_u32 s{rE}, s{sE}, s{sOS}"); I(f"s_addc_u32 s{rE+1}, s{sE+1}, 0")
    eid = {}
    def issueE(b, rt):
        if dbg & 8 and b > 0: eid[(b, rt)] = eid[(0, 0)]; return
        I(f"s_mov_b32 s{sOffX}, {hex(rt*524288)}")
        eid[(b, rt)] = I(f"buffer_load_dwordx4 {ar(16*b + 4*rt)}, v{vE}, {sr(rE)}, s{sOffX} offen offset:{b*256} {efflags}")
    eq = [] if elds else [(b, rt) for b in range(8) for rt in range(4)]
    for _ in range(eb): issueE(*eq.pop(0))
    I(f"s_add_u32 s{rV}, s{sV}, s{sT}"); I(f"s_addc_u32 s{rV+1}, s{sV+1}, 0")
    I(f"s_mov_b32 s{rV+2}, {hex(NREC)}"); I(f"s_mov_b32 s{rV+3}, 0x20000")
    for k in range(pre):
        e.wait_vm(ldid[k]); assert issue(0)
    if ts: I(f"v_mov_b32 v{vTS}, s{sTs}"); I(f"v_mov_b32 v{vTS+2}, s{sTs}")
    if ts == 2:
        I("s_memrealtime s[66:67]"); I("s_waitcnt lgkmcnt(0)"); I(f"v_writelane_b32 v{vTS}, s64, 62"); I(f"v_writelane_b32 v{vTS}, s66, 63")

    bg = []
    def drain(step, n=None):
        k = 0
        while bg and bg[0][0] <= step and (n is None or k < n):
            bg.pop(0)[1](); k += 1
    def push(nb, *fs):
        for f in fs: bg.append((nb, f))
    def L(s, **kw): return lambda: I(s, **kw)
    def selectors(out, SEL, t1, t2, t3, t4):
        out(f"v_and_b32 v{t1}, 7, v{c_}")
        out(f"v_and_b32 v{t2}, 1, v{t1}"); out(f"v_lshrrev_b32 v{t1}, 1, v{t1}")
        out(f"v_cmp_eq_u32 vcc, 1, v{t2}")
        out(f"v_mov_b32 v{t2}, 0x0c0c0100"); out(f"v_mov_b32 v{t3}, 0x01000c0c"); out(f"v_cndmask_b32 v{t2}, v{t2}, v{t3}, vcc")
        out(f"v_mov_b32 v{t3}, 0x0c0c0302"); out(f"v_mov_b32 v{t4}, 0x03020c0c"); out(f"v_cndmask_b32 v{t3}, v{t3}, v{t4}, vcc")
        out(f"v_mov_b32 v{t4}, 0x0c0c0c0c")
        for m in range(4):
            out(f"v_cmp_eq_u32 vcc, {m}, v{t1}")
            out(f"v_cndmask_b32 v{SEL+m}, v{t4}, v{t2}, vcc"); out(f"v_cndmask_b32 v{SEL+4+m}, v{t4}, v{t3}, vcc")
    def B(s): push(12, L(s))
    g = 3; ta = 9; tb = 15
    B(f"v_and_b32 v{g}, 3, v{wg_}")
    B(f"v_lshrrev_b32 v{ta}, 2, v{c_}"); B(f"v_and_b32 v{tb}, 3, v{c_}")
    B(f"v_lshlrev_b32 v{vSCw}, 6, v{ta}"); B(f"v_lshl_add_u32 v{vSCw}, v{g}, 4, v{vSCw}"); B(f"v_lshl_add_u32 v{vSCw}, v{tb}, 2, v{vSCw}")
    B(f"s_lshl_b32 s{sT}, s{sW}, 9"); B(f"s_add_u32 s{sT2}, s{sT}, {SC}"); B(f"v_add_u32 v{vSCw}, s{sT2}, v{vSCw}")
    B(f"v_lshrrev_b32 v{ta}, 3, v{c_}"); B(f"s_mul_i32 s{sT2}, s{sW}, {WSZ}")
    B(f"v_mul_u32_u24 v{vWr}, {PSZ}, v{ta}"); B(f"v_lshl_add_u32 v{vWr}, v{g}, 4, v{vWr}"); B(f"v_add_u32 v{vWr}, s{sT2}, v{vWr}")
    B(f"v_lshrrev_b32 v{ta}, 1, v{g}"); B(f"v_and_b32 v{tb}, 1, v{g}")
    B(f"v_lshlrev_b32 v{vOw}, 5, v{c_}"); B(f"v_lshl_add_u32 v{vOw}, v{tb}, 4, v{vOw}"); B(f"v_lshl_add_u32 v{vOw}, v{ta}, 3, v{vOw}")
    B(f"s_add_u32 s{sT2}, s{sT}, {OB}"); B(f"v_add_u32 v{vOw}, s{sT2}, v{vOw}")
    B(f"s_mov_b32 s{sM1}, 0xcccccccc"); B(f"s_mov_b32 s{sM1+1}, 0xcccccccc"); B(f"s_mov_b32 s{sM0}, 0xaaaaaaaa"); B(f"s_mov_b32 s{sM0+1}, 0xaaaaaaaa")
    if elds:
        B(f"v_xor_b32 v{ta}, v{wg_}, v{c_}"); B(f"v_lshlrev_b32 v{ta}, 4, v{ta}"); B(f"v_lshl_add_u32 v{ta}, v{c_}, {11 if erow else 8}, v{ta}")
        B(f"v_add_u32 v176, {EB}, v{ta}"); B(f"v_add_u32 v177, {EB + 65536}, v{ta}")
    vZs = 15; vPg = 9
    B(f"v_mov_b32 v{vZs}, 0")
    B(f"s_cmp_eq_u32 s{sW}, 0"); B(f"s_cselect_b32 s{sT}, 0, 16"); B(f"v_mov_b32 v{vPg}, s{sT}")
    if ts: B(f"v_and_b32 v{vL8}, 63, v0"); B(f"v_lshlrev_b32 v{vL8}, 3, v{vL8}")
    st = {}
    def task_kreduce(h, nb):
        X = KA + 16*(h % 2); half, hh = h // 2, h % 2
        for k in range(8): push(nb, L(f"v_add_f32_dpp v{X+k}, v{X+k}, v{X+k} row_ror:8 row_mask:0xf bank_mask:0x3"))
        for k in range(8): push(nb, L(f"v_add_f32_dpp v{X+k}, v{X+k+8}, v{X+k+8} row_ror:8 row_mask:0xf bank_mask:0xc"))
        for k in range(4): push(nb, L(f"v_add_f32_dpp v{X+k}, v{X+k}, v{X+k} row_shl:4 row_mask:0xf bank_mask:0x5"))
        for k in range(4): push(nb, L(f"v_add_f32_dpp v{X+k}, v{X+k+4}, v{X+k+4} row_shr:4 row_mask:0xf bank_mask:0xa"))
        for k in range(4): push(nb, L(f"v_add_f32_dpp v{X+k}, v{X+k}, v{X+k} quad_perm:[2,3,0,1] row_mask:0xf bank_mask:0xf"))
        for k in range(2): push(nb, L(f"v_cndmask_b32 v{X+k}, v{X+k}, v{X+k+2}, s[{sM1}:{sM1+1}]"))
        for k in range(2): push(nb, L(f"v_add_f32_dpp v{X+k}, v{X+k}, v{X+k} quad_perm:[1,0,3,2] row_mask:0xf bank_mask:0xf"))
        push(nb, L(f"v_cndmask_b32 v{X}, v{X}, v{X+1}, s[{sM0}:{sM0+1}]"))
        push(nb, L(f"v_min_u32 v{X}, -2, v{X}"))
        def wr(): st[('scw', h)] = I(f"ds_write_b32 v{vSCw}, v{X} offset:{half*2048 + hh*256}")
        push(nb, wr)
        if hh == 1 and bar:
            def barf(): e.wait_lg(st[('scw', h)]); I("s_barrier")
            push(nb + 6, barf)
    def task_oflush(h, nb):
        x = VA + 4*h
        push(nb, L(f"v_permlane32_swap_b32 v{x}, v{x+2}"), L(f"v_permlane32_swap_b32 v{x+1}, v{x+3}"),
                 L(f"v_add_f32 v{x}, v{x}, v{x+2}"), L(f"v_add_f32 v{x+1}, v{x+1}, v{x+3}"))
        def wr(): st[('ow', h)] = I(f"ds_write_b64 v{vOw}, {vr(x, 2)} offset:{h*2048}")
        push(nb, wr)
    def stamp(idx):
        I(f"s_memrealtime s[{sTs}:{sTs+1}]"); I("s_waitcnt lgkmcnt(0)"); I(f"v_writelane_b32 v{vTS}, s{sTs}, {idx}")
    wrid = {}
    WRB = [WR, P]
    def readW(h, b):
        wrid[(h, b)] = I(f"ds_read_b128 {vr(WRB[(h*8 + b) % 2])}, v{vWr} offset:{h*HSZ + b*64}")
    def buildA(tv):
        h, b, j = tv // 64, (tv // 8) % 8, tv % 8
        e.wait_lg(wrid[(h, b)])
        x = WRB[(h*8 + b) % 2] + j//2
        for mm in range(4): I(f"v_perm_b32 v{AD+4*(tv%2)+mm}, v{x}, v{x}, v{SEL+4*(j%2)+mm}")
    def waitW(half):
        if bar: I("s_barrier"); return
        x = (WR, KA, EF)[half]
        e.wait_lg(st['fl'])
        sn = e.snapshot()
        e.label(f"L_wchk{half}")
        I(f"v_and_b32 v{x}, v{x}, v{x+1}"); I(f"v_and_b32 v{x+2}, v{x+2}, v{x+3}"); I(f"v_and_b32 v{x}, v{x}, v{x+2}")
        I(f"v_readfirstlane_b32 s{sPoll}, v{x}")
        I(f"s_cmp_lg_u32 s{sPoll}, 0"); I(f"s_cbranch_scc1 L_wok{half}")
        sn = e.snapshot()
        I("s_sleep 2")
        I(f"ds_read_b128 {vr(x)}, v{vZs} offset:{FL + (0, 16, 64)[half]}", counted=False); I("s_waitcnt lgkmcnt(0)")
        I(f"s_branch L_wchk{half}")
        e.hists = [[]]
        e.join(f"L_wok{half}", sn)
        if ctl and half == 1: I("s_cmp_lg_u32 0, 0")
    STASH = 128; EF = 160; vEr = 176
    def pkreg(h, b):
        if elds: return STASH + 4*b if h == 0 else PK
        return SEL + 4*(b % 5) if (kdel and h == 0) else PK
    erd = {}
    def readE(b):
        for rt in range(4):
            if erow: erd[rt] = I(f"ds_read_b128 {vr(EF+4*rt)}, v{vEr + rt//2} offset:{(rt%2)*32768 + b*256}")
            else: erd[rt] = I(f"ds_read_b128 {vr(EF+4*rt)}, v{vEr + b//4} offset:{(b%4)*16384 + rt*4096}")
    def kmfma(h, b):
        if not elds: e.wait_vm(*[eid[(b, rt)] for rt in range(4)])
        for rt in range(4):
            d = vr(KA + 16*(h%2) + 4*rt)
            if elds: e.wait_lg(erd[rt])
            I(f"v_mfma_f32_16x16x32_bf16 {d}, {vr(EF+4*rt) if elds else ar(16*b+4*rt)}, {vr(pkreg(h, b))}, {d if b else '0'}")

    for t in range(512):
        ph, h, b, j = t // 256, (t // 64) % 4, (t // 8) % 8, t % 8
        p = slot[t]
        if j == 0: e.raw(f"; ---- {'V' if ph else 'K'}, head {h}, block {b}")
        if ph == 0:
            s = p[1]
            e.wait_vm(ldid[t], qid[h])
            I(f"v_dot2_f32_bf16 v{P+j}, v{s}, v{Q+4*h}, 0")
            for m in range(1, 4): I(f"v_dot2_f32_bf16 v{P+j}, v{s+m}, v{Q+4*h+m}, v{P+j}")
        else:
            tv = t - 256
            e.wait_vm(ldid[t])
            d = vr(VA + 4*h)
            I(f"v_mfma_f32_16x16x32_bf16 {d}, {vr(AD+4*(tv%2))}, v[{p[1]}:{p[1]+3}], {d if (b or j) else '0'}")
        busy.discard(p)
        if er > 0:
            for _ in range(er):
                if eq: issueE(*eq.pop(0))
        elif er < 0:
            if j == 0 or t == 1:
                for _ in range(4):
                    if eq: issueE(*eq.pop(0))
        elif eq and ((t < 2 and not eb and not kdel) or (j % 2 == 0 and t >= edel)):
            issueE(*eq.pop(0))
            if t < 2 and eq and not eb and not kdel: issueE(*eq.pop(0))
        if t in (20, 22, 24): loadq((t - 18)//2)
        k = 0
        while nxt[0] - (t + 1) < target(t + 1) and k < 2 and nxt[0] < 512:
            if ctl and t + 1 >= tc0 and t < 512 - tfree:
                I(f"s_cbranch_vccnz L_is{nxt[0]}"); sn = e.snapshot()
                I(f"s_waitcnt vmcnt({(RV or R)-1})"); I(f"s_cbranch_scc0 L_is{nxt[0]}"); sn += e.snapshot()
                I(f"s_waitcnt vmcnt({Rt-1})")
                e.join(f"L_is{nxt[0]}", sn)
            if not issue(t): break
            k += 1
        if ctl and t == tc0 - 2: I("s_mov_b64 vcc, 0"); I("s_cmp_lg_u32 0, 0")
        if ctl and t >= tc0 and t < 512 - tfree:
            if pg and j % 4 == 0:
                I(f"v_mov_b32 v{KA+5}, {t // 4}"); I(f"ds_write_b32 v{vPg}, v{KA+5} offset:{FL+36}")
            if not pg and ext and j == 0 and t // 8 == endm:
                I(f"v_mov_b32 v{KA+5}, {len(MS) + 1}"); I(f"ds_write_b32 v{vPg}, v{KA+5} offset:{FL+36}")
            if not pg and j == 0 and t // 8 in MS:
                I(f"v_mov_b32 v{KA+5}, {MS.index(t//8) + 1}"); I(f"ds_write_b32 v{vPg}, v{KA+5} offset:{FL+36}")
            if j % 4 == 1: st['md'] = I(f"ds_read_b32 v{KA+4}, v{vZs} offset:{FL+40}")
            if j % 4 == 3:
                e.wait_lg(st['md']); I(f"v_readfirstlane_b32 s{sPoll}, v{KA+4}")
                I(f"s_bitcmp1_b32 s{sPoll}, 1"); I("s_cselect_b64 vcc, -1, 0"); I(f"s_bitcmp1_b32 s{sPoll}, 0")
        assert t == 511 or nxt[0] > t + 1
        if 1 <= t <= 256 and j % 2 == 0:
            jp = (j - 2) % 8
            tp = t - 2
            I(f"v_cvt_pk_bf16_f32 v{pkreg(tp // 64, (tp // 8) % 8)+jp//2}, v{P+jp}, v{P+jp+1}")
        if elds:
            if t == tE - 3: st['fl'] = I(f"ds_read_b128 {vr(EF)}, v{vZs} offset:{FL + 64}")
            if t == tE: waitW(2)
            if 64 <= t < 256 and j == 6: readE(b)
        if 8 <= t <= 257 and j == 1 and not ((kdel or elds) and t - 8 < 64):
            tp = t - 8; kmfma((tp // 64) % 4, (tp // 8) % 8)
            if elds and tp // 64 == 1:
                kmfma(0, (tp // 8) % 8)
                if b == 0: task_kreduce(0, t + 1)
            if b == 0: task_kreduce((tp // 64) % 4, t + 1)
        if kdel and not elds and j == 3 and 0 <= t // 8 - 1 - kdel < 8:
            kmfma(0, t // 8 - 1 - kdel)
            if t // 8 - 1 - kdel == 7: task_kreduce(0, t + 1)
        if t == tBi: I("s_barrier")
        if t in (250, 374) and not bar:
            st['fl'] = I(f"ds_read_b128 {vr(WR if t == 250 else KA)}, v{vZs} offset:{FL + (16 if t > 250 else 0)}")
        if t == 205: selectors(lambda s: push(t, L(s)), SEL, AD, AD+1, AD+2, AD+3)
        if t >= 253:
            tn = t + 1 - 256
            if t == 253:
                assert not bg
                waitW(0); readW(0, 0)
            if 0 <= tn < 256:
                if tn % 8 == 2 and tn + 6 < 256:
                    hb = tn // 8 + 1
                    if hb == 16:
                        assert not bg
                        waitW(1)
                    readW(hb // 8, hb % 8)
                buildA(tn)
        if ph == 1 and t % 64 == 2 and h > 0: task_oflush(h - 1, t)
        drain(t, bgrate)
        if ts == 1 and j == 7: stamp(t // 8)
        if ts == 2 and t < 40: stamp(t)
        if ts == 2 and t >= 492: stamp(t - 452)
    drain(10**9)
    task_oflush(3, 0); drain(10**9)
    e.wait_lg(st[('ow', 3)])
    I("s_barrier")
    def ts_out(base_hdr, base_blk):
        I(f"s_memrealtime s[{sTs}:{sTs+1}]"); I("s_getreg_b32 s62, hwreg(HW_REG_XCC_ID)"); I("s_waitcnt lgkmcnt(0)")
        I(f"v_writelane_b32 v{vTS+2}, s{sTs}, 4"); I(f"v_writelane_b32 v{vTS+2}, s62, 5"); I(f"v_writelane_b32 v{vTS+2}, s{sW}, 7")
        I(f"s_lshl_b32 s{sT}, s2, 2"); I(f"s_add_u32 s{sT}, s{sT}, s{sW}"); I(f"s_lshl_b32 s{sT2}, s{sT}, 8"); I(f"s_add_u32 s{sT2}, s{sT2}, {hex(base_blk)}")
        I(f"v_lshrrev_b32 v{vT}, 1, v{vL8}"); I(f"v_add_u32 v{vTS+1}, s{sT2}, v{vT}"); I(f"global_store_dword v{vTS+1}, v{vTS}, s[{sWS}:{sWS+1}]")
        I(f"s_lshl_b32 s{sT2}, s{sT}, 5"); I(f"s_add_u32 s{sT2}, s{sT2}, {hex(base_hdr)}"); I(f"v_add_u32 v{vTS+1}, s{sT2}, v{vT}")
        I("s_mov_b64 exec, 0xff"); I(f"global_store_dword v{vTS+1}, v{vTS+2}, s[{sWS}:{sWS+1}]")
    if ts: ts_out(0x400000, 0x500000)
    I("s_endpgm")

    e.hists = [[]]; e.vmq = []; e.vm_done = 0; e.lgq = []; e.lg_done = 0
    e.raw(".p2align 6")
    e.join("L_helper", sn_entry)
    vF=1; vZ=2; vL16=3; vWw=5; vPm=6; vPw=8; vCh=15
    GA=16; PP=48; PD=56; AW=64; TM=72; SELH=84
    NOo=92; NOs=94; MOm=98; NOm=102; MKo=103; MKg=104; MKc=105; vOut=106; vFo=107; vL4=108; vG=109; POl=111; vPs=112; GO=116; sPg=64; sCn=65; sMe=66; sMd=67; sLate=68; sExt=69; sBt=70; sBs=71
    sHg=34; sMW=35; sFo=62; sFo2=63
    I(f"s_and_b32 s{sW}, s{sW}, 3")
    g = TM; ta = TM+1; tb = TM+2; tc = TM+3; td = TM+4
    I(f"v_and_b32 v{g}, 3, v{wg_}")
    def touch():
        I(f"s_lshl_b32 s{sT}, s{sG}, {22 if hperm else 24}"); I(f"s_lshl_b32 s{sT2}, s{sS}, 18"); I(f"s_add_u32 s{sT}, s{sT}, s{sT2}")
        I(f"v_and_b32 v{ta}, 3, v{wg_}"); I(f"v_lshlrev_b32 v{ta}, {HS.bit_length()-1}, v{ta}"); I(f"v_add_u32 v{ta}, s{sT}, v{ta}")
        I(f"s_cmp_lg_u32 s{sW}, 3"); I("s_cbranch_scc1 L_notlb"); sn = e.snapshot()
        I("s_waitcnt lgkmcnt(0)")
        if tlb & 1: I(f"global_load_dword v{GO+8}, v{ta}, s[{sK}:{sK+1}] nt")
        if tlb & 2: I(f"global_load_dword v{GO+9}, v{ta}, s[{sV}:{sV+1}] nt")
        e.join("L_notlb", sn)
    if tlb and twhen == 0: touch()
    if pf and not spf:
        I(f"v_lshlrev_b32 v{ta}, 15, v{g}"); I(f"v_lshl_add_u32 v{ta}, v{c_}, 7, v{ta}")
        I(f"s_lshl_b32 s{sT}, s{sG}, 17"); I(f"s_lshl_b32 s{sT2}, s{sS}, 11"); I(f"s_add_u32 s{sT}, s{sT}, s{sT2}")
        I(f"s_cmp_lt_u32 s{sW}, 2"); I("s_cbranch_scc1 L_nopf"); sn = e.snapshot()
        I("s_waitcnt lgkmcnt(0)")
        I(f"s_cmp_eq_u32 s{sW}, 2"); I(f"s_cselect_b32 s{sPC}, s{sE}, s{sF}"); I(f"s_cselect_b32 s{sPC+1}, s{sE+1}, s{sF+1}")
        I(f"s_add_u32 s{sPC}, s{sPC}, s{sT}"); I(f"s_addc_u32 s{sPC+1}, s{sPC+1}, 0")
        I(f"global_load_dword v{TM+9}, v{ta}, s[{sPC}:{sPC+1}]")
        e.join("L_nopf", sn)
    I(f"v_and_b32 v{td}, 63, v0"); I(f"v_lshlrev_b32 v{vL8}, 3, v{td}"); I(f"v_lshlrev_b32 v{vL16}, 4, v{td}"); I(f"v_lshlrev_b32 v{vL4}, 2, v{td}")
    I(f"v_mov_b32 v{vZ}, 0")
    e.raw("; LDS hand-off areas start empty (-1) / flags start at 0")
    for k in range(4): I(f"v_mov_b32 v{GA+k}, -1")
    I(f"s_lshl_b32 s{sT}, s{sW}, 10"); I(f"v_add_u32 v{ta}, s{sT}, v{vL16}")
    I(f"ds_write_b128 v{ta}, {vr(GA)} offset:{SC}"); I(f"ds_write_b64 v{vL8}, {vr(GA, 2)} offset:{PB}")
    I(f"v_and_b32 v{ta}, 124, v{vL4}"); I(f"ds_write_b32 v{ta}, v{vZ} offset:{FL}")
    I("s_waitcnt lgkmcnt(0)")
    if spf:
        I(f"s_lshl_b32 s{sT}, s{sG}, 2"); I(f"s_add_u32 s{sT}, s{sT}, s{sW}"); I(f"s_lshl_b32 s{sT}, s{sT}, 15"); I(f"s_lshl_b32 s{sT2}, s{sS}, 11"); I(f"s_add_u32 s{sT}, s{sT}, s{sT2}")
        I(f"s_add_u32 s{sPC}, s{sE}, s{sT}"); I(f"s_addc_u32 s{sPC+1}, s{sE+1}, 0")
        I(f"s_add_u32 s70, s{sF}, s{sT}"); I(f"s_addc_u32 s71, s{sF+1}, 0")
        for base in (sPC, 70):
            for k in range(0, 2048, spf): I(f"s_load_dword s69, s[{base}:{base+1}], {k}")
    I("s_barrier")
    if ts: I(f"v_mov_b32 v{vTS}, s{sTs}"); I(f"v_mov_b32 v{vTS+2}, s{sTs}")
    def hstamp(idx):
        if ts in (1, 2): stamp(idx)
    def lsbmask(dst, regs):
        for k, r in enumerate(regs): I(f"v_alignbit_b32 v{dst}, v{r}, v{dst if k else vZ}, 1")
    def allnew(new, old, n, lbl):
        I(f"v_xor_b32 v{new}, v{new}, v{old}")
        I(f"v_cmp_ne_u32 vcc, {hex((0xffffffff << (32-n)) & 0xffffffff) if n < 32 else -1}, v{new}"); I("s_nop 4")
        if not dbg & 16: I(f"s_cbranch_vccnz {lbl}")
    I(f"s_add_u32 s{rW}, s{sWS}, {hex(wsoff << 20)}"); I(f"s_addc_u32 s{rW+1}, s{sWS+1}, 0"); I(f"s_mov_b32 s{rW+2}, 0x200000"); I(f"s_mov_b32 s{rW+3}, 0x20000")
    I(f"s_lshl_b32 s{sGa}, s{sG}, 14")
    I(f"s_lshl_b32 s{sOS}, s{sS}, {7 if lay else 9}")
    if sb: I(f"s_lshl_b32 s{sSl}, s{sS}, 8"); I(f"s_add_u32 s{sSl}, s{sGa}, s{sSl}")
    else: I(f"s_add_u32 s{sSl}, s{sGa}, s{sOS}")
    vSt = 110
    if lay: I(f"v_lshlrev_b32 v{vSt}, 3, v{c_}"); I(f"v_lshl_add_u32 v{vSt}, v{g}, 11, v{vSt}")
    else: I(f"v_mov_b32 v{vSt}, v{vL8}")
    I(f"s_lshl_b32 s{sMB}, s{sG}, 10"); I(f"s_add_u32 s{sMB}, s{sMB}, {MBOX}")
    I(f"s_lshl_b32 s{sT2}, s{sG}, 3"); I(f"s_add_u32 s{sD}, s{sD}, s{sT2}"); I(f"s_addc_u32 s{sD+1}, s{sD+1}, 0")
    if sb:
        I(f"v_lshrrev_b32 v{ta}, 3, v{td}"); I(f"v_and_b32 v{tb}, 7, v{td}"); I(f"v_lshlrev_b32 v{vG}, 8, v{ta}"); I(f"v_lshl_add_u32 v{vG}, v{tb}, 4, v{vG}")
        I(f"v_and_b32 v{ta}, 1, v{ta}"); I(f"v_lshlrev_b32 v{vPm}, 5, v{tb}"); I(f"v_lshl_add_u32 v{vPm}, v{ta}, 4, v{vPm}"); I(f"v_lshl_add_u32 v{vPm}, v{g}, 2, v{vPm}")
        I(f"s_mov_b32 s{sM1}, 0xff00ff00"); I(f"s_mov_b32 s{sM1+1}, 0xff00ff00")
    elif lay:
        I(f"v_lshrrev_b32 v{ta}, 3, v{c_}"); I(f"v_and_b32 v{tb}, 7, v{c_}"); I(f"v_lshlrev_b32 v{vG}, 11, v{ta}")
        I(f"v_lshl_add_u32 v{vG}, v{tb}, 4, v{vG}"); I(f"v_lshl_add_u32 v{vG}, v{g}, 7, v{vG}")
        I(f"v_lshlrev_b32 v{vCh}, 7, v{c_}"); I(f"v_add_u32 v{vCh}, {2048+124}, v{vCh}")
    else:
        I(f"v_lshl_add_u32 v{vG}, v{g}, 9, v{vQ}")
        I(f"v_lshlrev_b32 v{vCh}, 9, v{c_}"); I(f"v_add_u32 v{vCh}, 252, v{vCh}")
    if frot:
        assert not sb
        if frot == 1: I(f"v_subrev_u32 v{vPm}, s{sG}, v{c_}"); I(f"v_and_b32 v{vPm}, 15, v{vPm}")
        else: I(f"v_mov_b32 v{vPm}, v{c_}")
        I(f"v_lshl_add_u32 v{vPm}, v{g}, 4, v{vPm}"); I(f"v_lshlrev_b32 v{vPm}, 2, v{vPm}")
    elif not sb: I(f"v_lshl_add_u32 v{vPm}, v{g}, 2, v{vQ}")
    if dbg & 64: I(f"s_add_u32 s{rW}, s{rW}, 0x1000000"); I(f"s_addc_u32 s{rW+1}, s{rW+1}, 0")
    I(f"s_mov_b32 s{sHg}, 2")
    I(f"s_cmp_lg_u32 s{sW}, 1"); I("s_cbranch_scc1 L_lead"); sn = e.snapshot()
    if not dbg & 1:
        I(f"s_sub_u32 s{sT}, s{sS}, s{sG}"); I(f"s_and_b32 s{sT2}, s{sT}, 3"); I("s_cbranch_scc1 L_lead1"); sn1 = e.snapshot()
        I(f"s_bfe_u32 s{sT}, s{sT}, 0x20002")
        I(f"s_lshr_b32 s{sHg}, s{sT}, 1"); I(f"s_lshl_b32 s{sT2}, s{sHg}, 13"); I(f"s_add_u32 s{sGa}, s{sGa}, s{sT2}")
        I(f"s_and_b32 s{sT2}, s{sT}, 1"); I(f"s_lshl_b32 s{sT2}, s{sT2}, {7 if sb else (12 if lay else 8)}"); I(f"s_add_u32 s{sGa}, s{sGa}, s{sT2}"); I(f"s_add_u32 s{sGa2}, s{sGa}, {0x400 if lay else 0x1000}")
        I(f"s_lshl_b32 s{sMW}, s{sT}, 8"); I(f"s_add_u32 s{sMW}, s{sMW}, s{sMB}")
        if not sb: I(f"buffer_load_dword v{MKc}, v{vCh}, {sr(rW)}, s{sGa} offen {ldflags}")
        I(f"buffer_load_dword v{NOm}, v{vPm}, {sr(rW)}, s{sMW} offen {ldflags}")
        for k in range(2 if sb else 0): I(f"buffer_load_dwordx4 {vr(GA+4*k)}, v{vG}, {sr(rW)}, s{sGa} offen offset:{k*2048} {ldflags}")
        for k in range(0 if sb else 4): I(f"buffer_load_dwordx4 {vr(GA+4*k)}, v{vG}, {sr(rW)}, s{sGa if k < 2 else sGa2} offen offset:{(k%2)*(512 if lay else 2048)} {ldflags}")
        I(f"s_lshl_b32 s{sT}, s{sT}, 2"); I(f"v_mov_b32 v{tb}, s{sT}"); I(f"v_mov_b32 v{ta}, 1")
        I("s_waitcnt vmcnt(0)")
        if sb: lsbmask(MKg, range(GA, GA+8))
        else: lsbmask(MKg, range(GA, GA+16)); lsbmask(MKc, [MKc])
        I(f"v_not_b32 v{NOm}, v{NOm}")
        I(f"s_cmp_lg_u32 s{sHg}, 0"); I("s_cbranch_scc1 L_lead1"); sn1 += e.snapshot()
        if not dbg & 128: I("s_mov_b64 exec, 1"); I(f"global_store_dword v{tb}, v{ta}, s[{sD}:{sD+1}] {stflags}"); I("s_mov_b64 exec, -1")
        e.join("L_lead1", sn1)
    I(f"v_mov_b32 v{ta}, 1"); I(f"ds_write_b32 v{vZ}, v{ta} offset:{FL+32}")
    e.join("L_lead", sn)
    if codepf:
        I(f"s_getpc_b64 s[{sPC}:{sPC+1}]")
        e.label("L_pc")
        I(f"s_sub_u32 s{sPC}, s{sPC}, L_pc-{KN}"); I(f"s_subb_u32 s{sPC+1}, s{sPC+1}, 0")
        I(f"v_and_b32 v{ta}, 0xff, v0"); I(f"v_lshlrev_b32 v{ta}, 7, v{ta}")
        I(f"global_load_dword v{TM+8}, v{ta}, s[{sPC}:{sPC+1}] offset:1024")
    slice_off(sT2, sT, 8)
    I(f"s_add_u32 s{rF}, s{sF}, s{sT2}"); I(f"s_addc_u32 s{rF+1}, s{sF+1}, 0")
    I(f"s_sub_u32 s{rF+2}, 0x200000, s{sT2}"); I(f"s_mov_b32 s{rF+3}, 0x20000")
    I(f"s_lshl_b32 s{sOP}, s{sG}, 15"); I(f"s_add_u32 s{sOP}, s{sOP}, {OPART}")
    I(f"s_lshl_b32 s{sT}, s{sW}, 13"); I(f"s_add_u32 s{sOS}, s{sOS}, s{sT}"); I(f"s_add_u32 s{sOS}, s{sOS}, s{sOP}")
    I(f"s_lshr_b32 s{sT}, s{sS}, 2"); I(f"s_lshl_b32 s{sFo}, s{sT}, 13"); I(f"s_add_u32 s{sFo}, s{sFo}, s{sOP}")
    I(f"s_and_b32 s{sT2}, s{sS}, 3"); I(f"s_lshl_b32 s{sOP2}, s{sT2}, {11 if lay else 7}"); I(f"s_add_u32 s{sFo}, s{sFo}, s{sOP2}"); I(f"s_add_u32 s{sFo2}, s{sFo}, {0x400 if lay else 0x1000}")
    I(f"v_lshrrev_b32 v{ta}, 3, v{td}"); I(f"v_and_b32 v{tb}, 7, v{td}"); I(f"v_lshlrev_b32 v{vFo}, {7 if lay else 9}, v{ta}"); I(f"v_lshl_add_u32 v{vFo}, v{tb}, 4, v{vFo}")
    if hperm: I(f"s_lshl_b32 s{sT}, s{sT}, 4"); I(f"s_add_u32 s{sT}, s{sT}, s{sG}")
    else: I(f"s_lshl_b32 s{sOP2}, s{sG}, 2"); I(f"s_add_u32 s{sT}, s{sT}, s{sOP2}")
    I(f"s_lshl_b32 s{sT}, s{sT}, 8"); I(f"s_lshl_b32 s{sT2}, s{sT2}, 6"); I(f"s_add_u32 s{sT}, s{sT}, s{sT2}")
    I(f"v_lshlrev_b32 v{vOut}, 3, v{tb}"); I(f"v_lshl_add_u32 v{vOut}, v{g}, 1, v{vOut}"); I(f"v_add_u32 v{vOut}, s{sT}, v{vOut}")
    I(f"v_lshrrev_b32 v{ta}, 3, v{c_}"); I(f"v_lshl_add_u32 v{vPw}, v{ta}, 2, v{g}"); I(f"v_lshlrev_b32 v{vPw}, 5, v{vPw}")
    I(f"s_lshl_b32 s{sT}, s{sW}, {9+LK}"); I(f"v_lshlrev_b32 v{vF}, {15 if frot else 19}, v{g}"); I(f"v_add3_u32 v{vF}, v{vF}, v{vQ}, s{sT}")
    I(f"v_lshrrev_b32 v{ta}, 2, v{c_}"); I(f"v_mul_u32_u24 v{vWw}, {WSZ}, v{ta}")
    I(f"v_lshrrev_b32 v{ta}, 1, v{g}"); I(f"v_mul_u32_u24 v{ta}, {HSZ}, v{ta}"); I(f"s_lshl_b32 s{sT}, s{sW}, 7"); I(f"v_add3_u32 v{vWw}, v{vWw}, v{ta}, s{sT}")
    I(f"v_and_b32 v{ta}, 3, v{c_}"); I(f"v_lshl_add_u32 v{vWw}, v{ta}, 4, v{vWw}"); I(f"v_and_b32 v{ta}, 1, v{g}"); I(f"v_lshl_add_u32 v{vWw}, v{ta}, 3, v{vWw}")
    I(f"s_lshl_b32 s{sT}, s{sW}, 11"); I(f"s_add_u32 s{sT}, s{sT}, {OB}"); I(f"v_add_u32 v{vT}, s{sT}, v{vL8}")
    if ctl:
        I(f"s_lshl_b32 s{sPg}, s{sG}, {6 + psh}"); I(f"s_add_u32 s{sPg}, s{sPg}, {PRG}")
        I(f"v_lshrrev_b32 v{vPs}, 2, v{vL4}"); I(f"v_min_u32 v{vPs}, {16*len(MS)-1}, v{vPs}"); I(f"v_lshlrev_b32 v{vPs}, {psh}, v{vPs}")
    selectors(I, SELH, ta, tb, tc, td)
    cs = struct.unpack('<I', struct.pack('<f', (128 ** -0.5) * math.log2(math.e)))[0]
    I(f"s_mov_b32 s{sCS}, {hex(cs)}")
    if sb: I(f"s_mov_b32 s{sM0}, 0xffff"); I(f"s_mov_b32 s{sM0+1}, 0x207")
    def ldswait(lbl, vaddr, off, val, slp_):
        e.label(lbl)
        I(f"s_sleep {slp_}")
        I(f"ds_read_b32 v{TM}, v{vaddr} offset:{off}"); I("s_waitcnt lgkmcnt(0)")
        I(f"v_readfirstlane_b32 s{sPoll}, v{TM}")
        I(f"s_cmp_eq_u32 s{sPoll}, {val}"); I(f"s_cbranch_scc1 {lbl}")
    def entry_loads():
        I(f"buffer_load_dwordx2 {vr(NOo, 2)}, v{vSt}, {sr(rW)}, s{sOS} offen {ldflags}")
        I(f"s_cmp_lg_u32 s{sW}, 0"); I("s_cbranch_scc1 L_el"); sn = e.snapshot()
        if ctl: I(f"buffer_load_dword v{POl}, v{vPs}, {sr(rW)}, s{sPg} offen {ldflags}")
        I(f"s_add_u32 s{sT}, s{sSl}, 0x2000")
        if sb: I(f"buffer_load_dword v{NOs}, v{vL4}, {sr(rW)}, s{sSl} offen {ldflags}"); I(f"buffer_load_dword v{NOs+2}, v{vL4}, {sr(rW)}, s{sT} offen {ldflags}")
        else: I(f"buffer_load_dwordx2 {vr(NOs, 2)}, v{vSt}, {sr(rW)}, s{sSl} offen {ldflags}"); I(f"buffer_load_dwordx2 {vr(NOs+2, 2)}, v{vSt}, {sr(rW)}, s{sT} offen {ldflags}")
        for k in range(2): I(f"buffer_load_dwordx2 {vr(MOm+2*k, 2)}, v{vL8}, {sr(rW)}, s{sMB} offen offset:{k*512} {ldflags}")
        for k in range(2): I(f"buffer_load_dwordx4 {vr(GO+4*k)}, v{vFo}, {sr(rW)}, s{sFo2 if k else sFo} offen {ldflags}")
        if otouch & 2: I(f"global_load_ushort v{GO+8}, v{vOut}, s[{sO}:{sO+1}]")
        e.join("L_el", sn)
    if tlb and twhen == 1: touch()
    if oearly == 1 and not dbg & 1: entry_loads()
    if elds:
        slice_off(sT2, sT, 8)
        I(f"s_add_u32 s{rK}, s{sE}, s{sT2}"); I(f"s_addc_u32 s{rK+1}, s{sE+1}, 0")
        I(f"s_sub_u32 s{rK+2}, 0x200000, s{sT2}"); I(f"s_mov_b32 s{rK+3}, 0x20000")
        if erow:
            I(f"v_lshlrev_b32 v{td}, 8, v{g}")
            I(f"s_lshl_b32 s{sOff}, s{sG}, {2 if erot else 6}"); I(f"s_add_u32 s{sOff}, s{sOff}, s{sW}")
            e.vmq = []; e.vm_done = 0
            did = []
            for k in range(0 if dbg & 8 else 32):
                if k >= edepth: e.wait_vm(did[k - edepth])
                if k % 2 == 0:
                    if k: I(f"s_add_u32 s{sOff}, s{sOff}, 4")
                    I(f"s_and_b32 s{sOff}, s{sOff}, 63"); I(f"s_and_b32 s{sT2}, s{sOff}, 15")
                    I(f"v_xor_b32 v{tb}, s{sT2}, v{c_}"); I(f"v_lshl_add_u32 v{tb}, v{tb}, 4, v{td}")
                    I(f"s_lshl_b32 s{sOffX}, s{sOff}, 15"); I(f"s_lshl_b32 s{sT}, s{sOff}, 11"); I(f"s_add_u32 m0, s{sT}, {EB}")
                did.append(I(f"buffer_load_dwordx4 v{tb}, {sr(rK)}, s{sOffX} offen offset:{(k%2)*1024} {efflags} lds"))
        else:
            I(f"v_and_b32 v{ta}, 15, v{wg_}"); I(f"v_xor_b32 v{tb}, v{ta}, v{c_}"); I(f"v_lshlrev_b32 v{tb}, 4, v{tb}"); I(f"v_lshl_add_u32 v{tb}, v{ta}, 15, v{tb}")
            I(f"s_and_b32 s{sOff}, s{sG}, {7 if erot else 0}"); I(f"s_lshl_b32 s{sT2}, s{sW}, 10"); I(f"s_add_u32 s{sT2}, s{sT2}, {EB}")
            e.vmq = []; e.vm_done = 0
            did = []
            for k in range(0 if dbg & 8 else 32):
                bb, m = k // 4, k % 4
                if k >= edepth: e.wait_vm(did[k - edepth])
                if m == 0:
                    if bb: I(f"s_add_u32 s{sOff}, s{sOff}, 1"); I(f"s_and_b32 s{sOff}, s{sOff}, 7")
                    I(f"s_lshl_b32 s{sOffX}, s{sOff}, {8+LK}"); I(f"s_lshl_b32 s{sT}, s{sOff}, 14"); I(f"s_add_u32 s{sT}, s{sT}, s{sT2}")
                else: I(f"s_add_u32 s{sOffX}, s{sOffX}, 0x80000"); I(f"s_add_u32 s{sT}, s{sT}, 0x1000")
                I(f"s_mov_b32 m0, s{sT}")
                did.append(I(f"buffer_load_dwordx4 v{tb}, {sr(rK)}, s{sOffX} offen {efflags} lds"))
        I(f"s_lshl_b32 s{sT}, s{sW}, 2"); I(f"v_mov_b32 v{ta}, s{sT}"); I(f"v_mov_b32 v{tc}, 1")
        I("s_waitcnt vmcnt(0)")
        I(f"ds_write_b32 v{ta}, v{tc} offset:{FL + 64}")
    elif pace:
        I(f"s_lshl_b32 s{sT}, s{sW}, 9"); I(f"v_mov_b32 v{tb}, s{sT}")
        ldswait("L_pace", tb, SC, -1, 16)
    if tlb and twhen == 2: touch()
    if fpf:
        I(f"s_lshl_b32 s{sT}, s{sG}, 2"); I(f"s_add_u32 s{sT}, s{sT}, s{sW}"); I(f"s_lshl_b32 s{sT}, s{sT}, 15"); I(f"v_lshlrev_b32 v{ta}, 7, v{c_}")
        I(f"buffer_load_dword v{tb}, v{ta}, {sr(rF)}, s{sT} offen"); I("s_waitcnt vmcnt(0)")
        if fpf > 1: I(f"s_sleep {fpf}")
    if oearly == 2 and not dbg & 1: entry_loads()
    e.vmq = []; e.vm_done = 0
    fid = []
    for k in range(0 if dbg & 2 else 32):
        rr, u = k // 2, k % 2
        if k >= fdepth: e.wait_vm(fid[k - fdepth])
        if u == 0 and frot:
            I(f"s_add_u32 s{sOffX}, s{sG}, {rr if frot == 1 else 0}") if frot == 1 else I(f"s_mov_b32 s{sOffX}, {rr}")
            I(f"s_and_b32 s{sOffX}, s{sOffX}, 15"); I(f"s_lshl_b32 s{sOffX}, s{sOffX}, 17")
        elif u == 0: I(f"s_mov_b32 s{sOffX}, {hex(rr*32768)}")
        fid.append(I(f"buffer_load_dwordx4 {ar(4*(16*u+rr))}, v{vF}, {sr(rF)}, s{sOffX} offen offset:{u*256*kk} {efflags}"))
    if not dbg & 1:
        if oearly == 0: entry_loads()
        I(f"s_cmp_lg_u32 s{sW}, 0"); I("s_cbranch_scc1 L_init")
        sn0 = e.snapshot()
        e.label("L_ispin")
        I("s_mov_b64 exec, 1"); I(f"global_load_dwordx2 {vr(TM, 2)}, v{vZ}, s[{sD}:{sD+1}] {ldflags}"); I("s_mov_b64 exec, -1")
        I("s_waitcnt vmcnt(0)")
        I(f"v_and_b32 v{TM}, v{TM}, v{TM+1}")
        I(f"v_readfirstlane_b32 s{sPoll}, v{TM}")
        I(f"s_cmp_lg_u32 s{sPoll}, {'0x7654321' if dbg & 128 else 0}"); I("s_cbranch_scc1 L_init0")
        sn = e.snapshot()
        I("s_sleep 32"); I("s_branch L_ispin")
        e.hists = [[]]
        e.join("L_init0", sn)
        for k in range(0, 4, 2 if sb else 1): I(f"v_not_b32 v{NOs+k}, v{NOs+k}")
        lsbmask(MKo, range(GO, GO+8))
        if npoll > 1: I(f"ds_write_b32 v{vL4}, v{MKo} offset:{MK}")
        ldswait("L_h1", vZ, FL+32, 0, 1)
        e.join("L_init", sn0)
    I("s_waitcnt vmcnt(0) lgkmcnt(0)")
    if dbg & 64: I(f"s_mov_b32 s{rW}, s{sWS}"); I(f"s_mov_b32 s{rW+1}, s{sWS+1}")
    I(f"v_not_b32 v{NOo}, v{NOo}"); I(f"v_not_b32 v{NOo+1}, v{NOo+1}")
    hstamp(0)
    for half in range(2):
        if skew & 8:
            I(f"s_add_u32 s{sT}, s2, s{sW}"); I(f"s_and_b32 s{sT}, s{sT}, 3"); I(f"s_cbranch_scc1 L_nosk{half}"); sn = e.snapshot()
            for _ in range(10): I("s_sleep 127")
            e.join(f"L_nosk{half}", sn)
        if bar: I("s_barrier")
        if dbg & 1: I(f"s_branch L_w{half}")
        I(f"s_cmp_lg_u32 s{sW}, 0"); I(f"s_cbranch_scc1 L_oth{half}")
        sn_other = e.snapshot()
        if half: I(f"s_add_u32 s{sSl}, s{sSl}, 0x2000")
        e.label(f"L_sspin{half}")
        I("s_sleep 4")
        for k in range(4): I(f"ds_read_b64 {vr(TM+2*k, 2)}, v{vL8} offset:{SC + half*2048 + k*512}")
        I("s_waitcnt lgkmcnt(0)")
        I(f"v_max3_u32 v{GA}, v{TM}, v{TM+1}, v{TM+2}"); I(f"v_max3_u32 v{GA+1}, v{TM+3}, v{TM+4}, v{TM+5}")
        I(f"v_max3_u32 v{GA}, v{GA}, v{TM+6}, v{TM+7}"); I(f"v_max_u32 v{GA}, v{GA}, v{GA+1}")
        I(f"v_cmp_eq_u32 vcc, -1, v{GA}"); I("s_nop 4"); I(f"s_cbranch_vccnz L_sspin{half}")
        hstamp(1 + 8*half)
        for k in range(1, 4):
            I(f"v_add_f32 v{TM}, v{TM}, v{TM+2*k}"); I(f"v_add_f32 v{TM+1}, v{TM+1}, v{TM+2*k+1}")
        if sb:
            I(f"v_bfe_u32 v{TM+2}, v{TM}, 17, 1"); I(f"v_add3_u32 v{TM+2}, v{TM}, v{TM+2}, s{sM0}"); I(f"v_and_b32 v{TM+2}, 0xfffe0000, v{TM+2}")
            I(f"v_cmp_class_f32 vcc, v{TM}, s{sM0+1}"); I(f"v_cndmask_b32 v{TM}, v{TM+2}, v{TM}, vcc")
            I(f"v_cvt_pk_bf16_f32 v{TM}, v{TM}, v{TM+1}"); I(f"v_bfi_b32 v{TM}, 1, v{NOs+2*half}, v{TM}")
            if not dbg & 32: I(f"buffer_store_dword v{TM}, v{vL4}, {sr(rW)}, s{sSl} offen {stflags}")
        else:
            for k in range(2): I(f"v_bfi_b32 v{TM+k}, 1, v{NOs+2*half+k}, v{TM+k}")
            if not dbg & 32: I(f"buffer_store_dwordx2 {vr(TM, 2)}, v{vSt}, {sr(rW)}, s{sSl} offen {stflags}")
        hstamp(2 + 8*half)
        if slp0: I(f"s_sleep {slp0}")
        e.label(f"L_spin{half}")
        I(f"s_sleep {slp}")
        I(f"buffer_load_dwordx2 {vr(GA, 2)}, v{vL8}, {sr(rW)}, s{sMB} offen offset:{half*512} {ldflags}")
        I("s_waitcnt vmcnt(0)")
        I(f"v_xor_b32 v{TM}, v{GA}, v{MOm+2*half}"); I(f"v_xor_b32 v{TM+1}, v{GA+1}, v{MOm+2*half+1}")
        I(f"v_and_b32 v{TM}, v{TM}, v{TM+1}"); I(f"v_and_b32 v{TM}, 1, v{TM}")
        I(f"v_cmp_eq_u32 vcc, 0, v{TM}"); I(f"v_and_b32 v{GA}, -2, v{GA}"); I(f"v_and_b32 v{GA+1}, -2, v{GA+1}"); I("s_nop 2")
        if not dbg & 16: I(f"s_cbranch_vccnz L_spin{half}")
        I(f"v_cvt_pk_bf16_f32 v{GA}, v{GA}, v{GA+1}"); I(f"v_min_u32 v{GA}, -2, v{GA}")
        I(f"ds_write_b32 v{vL4}, v{GA} offset:{PB + half*256}")
        I(f"s_branch L_lrd{half}")
        sn_h0 = e.snapshot()
        e.hists = [[]]
        e.join(f"L_oth{half}", sn_other)
        I(f"s_cmp_lg_u32 s{sHg}, {half}"); I(f"s_cbranch_scc1 L_lspin{half}"); sn = e.snapshot()
        ldswait(f"L_gwait{half}", vZ, SC + half*2048 + 256, -1, 8)
        e.label(f"L_gspin{half}")
        I(f"s_sleep {gslp}")
        if sb:
            for k in range(2): I(f"buffer_load_dwordx4 {vr(GA+4*k)}, v{vG}, {sr(rW)}, s{sGa} offen offset:{k*2048} {ldflags}")
            I("s_waitcnt vmcnt(0)")
            lsbmask(TM, range(GA, GA+8)); allnew(TM, MKg, 8, f"L_gspin{half}")
            Y = GA + 8
            for k in range(8):
                I(f"v_and_b32 v{Y+2*k+1}, 0xffff0000, v{GA+k}"); I(f"v_and_b32 v{GA+k}, -2, v{GA+k}"); I(f"v_lshlrev_b32 v{Y+2*k}, 16, v{GA+k}")
            for m in range(8): I(f"v_add_f32 v{GA+m}, v{Y+m}, v{Y+8+m}")
        else:
            I(f"buffer_load_dword v{TM}, v{vCh}, {sr(rW)}, s{sGa} offen {ldflags}")
            I("s_waitcnt vmcnt(0)")
            lsbmask(TM, [TM]); allnew(TM, MKc, 1, f"L_gspin{half}")
            e.label(f"L_gfull{half}")
            for k in range(4): I(f"buffer_load_dwordx4 {vr(GA+4*k)}, v{vG}, {sr(rW)}, s{sGa if k < 2 else sGa2} offen offset:{(k%2)*(512 if lay else 2048)} {ldflags}")
            I("s_waitcnt vmcnt(0)")
            lsbmask(TM, range(GA, GA+16)); allnew(TM, MKg, 16, f"L_gfull{half}")
            for k in range(16): I(f"v_and_b32 v{GA+k}, -2, v{GA+k}")
            for k in range(1, 4):
                for m in range(4): I(f"v_add_f32 v{GA+m}, v{GA+m}, v{GA+4*k+m}")
        def rowsum(x):
            I(f"v_permlane16_swap_b32 v{x}, v{x+1}"); I(f"v_permlane16_swap_b32 v{x+2}, v{x+3}")
            I(f"v_add_f32 v{x}, v{x}, v{x+1}"); I(f"v_add_f32 v{x+2}, v{x+2}, v{x+3}")
            I(f"v_permlane32_swap_b32 v{x}, v{x+2}"); I(f"v_add_f32 v{x}, v{x}, v{x+2}")
        rowsum(GA)
        if sb:
            rowsum(GA+4)
            for x in (GA, GA+4): I(f"v_add_f32_dpp v{x}, v{x}, v{x} row_ror:8 row_mask:0xf bank_mask:0xf")
            I(f"v_cndmask_b32 v{GA}, v{GA}, v{GA+4}, s[{sM1}:{sM1+1}]")
        m = GA+5; m2 = GA+6
        def allred(op):
            I(f"{op}_dpp v{m}, v{GA}, v{GA} row_ror:8 row_mask:0xf bank_mask:0xf")
            for r in (4, 2, 1): I(f"{op}_dpp v{m}, v{m}, v{m} row_ror:{r} row_mask:0xf bank_mask:0xf")
            for sw in (16, 32): I(f"v_mov_b32 v{m2}, v{m}"); I(f"v_permlane{sw}_swap_b32 v{m}, v{m2}"); I(f"{op} v{m}, v{m}, v{m2}")
        allred("v_max_f32")
        I(f"v_mul_f32 v{m}, s{sCS}, v{m}"); I(f"v_fma_f32 v{GA}, v{GA}, s{sCS}, -v{m}"); I(f"v_exp_f32 v{GA}, v{GA}")
        allred("v_add_f32")
        I(f"v_rcp_f32 v{m}, v{m}"); I(f"v_mul_f32 v{GA}, v{GA}, v{m}")
        I(f"v_bfi_b32 v{GA}, 1, v{NOm}, v{GA}")
        if not dbg & (32 + 512): I(f"buffer_store_dword v{GA}, v{vPm}, {sr(rW)}, s{sMW} offen {stflags}")
        hstamp(3 + 8*half)
        e.join(f"L_lspin{half}", sn)
        I(f"s_sleep {lslp}")
        e.join(f"L_lrd{half}", sn_h0)
        for k in range(2): I(f"ds_read_b128 {vr(PP + 4*k)}, v{vPw} offset:{PB + half*256 + k*16}")
        I("s_waitcnt lgkmcnt(0)")
        I(f"v_max3_u32 v{TM}, v{PP}, v{PP+1}, v{PP+2}"); I(f"v_max3_u32 v{TM+1}, v{PP+3}, v{PP+4}, v{PP+5}")
        I(f"v_max3_u32 v{TM}, v{TM}, v{PP+6}, v{PP+7}"); I(f"v_max_u32 v{TM}, v{TM}, v{TM+1}")
        I(f"v_cmp_eq_u32 vcc, -1, v{TM}"); I("s_nop 4"); I(f"s_cbranch_vccnz L_lspin{half}")
        e.label(f"L_w{half}")
        hstamp(4 + 8*half)
        def pd(rr):
            for mm in range(4): I(f"v_perm_b32 v{PD+4*(rr%2)+mm}, v{PP+rr//2}, v{PP+rr//2}, v{SELH+4*(rr%2)+mm}")
        pd(0)
        for rr in range(16):
            if rr < 15: pd(rr+1)
            for u in range(2):
                c = vr(AW+4*u) if rr else "0"
                I(f"v_mfma_f32_16x16x32_bf16 {vr(AW+4*u)}, {vr(PD+4*(rr%2))}, {ar(4*(16*u+rr))}, {c}")
        for u in range(2):
            x = AW+4*u; H = GA+8*u; Lo = H+2; f = H+4
            I(f"v_cvt_pk_bf16_f32 v{H}, v{x}, v{x+1}"); I(f"v_cvt_pk_bf16_f32 v{H+1}, v{x+2}, v{x+3}")
            I(f"v_lshlrev_b32 v{f}, 16, v{H}"); I(f"v_and_b32 v{f+1}, 0xffff0000, v{H}")
            I(f"v_lshlrev_b32 v{f+2}, 16, v{H+1}"); I(f"v_and_b32 v{f+3}, 0xffff0000, v{H+1}")
            for k in range(4): I(f"v_sub_f32 v{f+k}, v{x+k}, v{f+k}")
            I(f"v_cvt_pk_bf16_f32 v{Lo}, v{f}, v{f+1}"); I(f"v_cvt_pk_bf16_f32 v{Lo+1}, v{f+2}, v{f+3}")
            I(f"ds_write_b64 v{vWw}, {vr(H, 2)} offset:{2*half*HSZ + u*64}"); I(f"ds_write_b64 v{vWw}, {vr(Lo, 2)} offset:{2*half*HSZ + u*64 + PSZ}")
        I("s_waitcnt lgkmcnt(0)")
        hstamp(5 + 8*half)
        if bar: I("s_barrier")
        else:
            I(f"s_lshl_b32 s{sT}, s{sW}, 2"); I(f"v_mov_b32 v{TM}, s{sT}"); I(f"v_mov_b32 v{TM+1}, 1")
            I(f"ds_write_b32 v{TM}, v{TM+1} offset:{FL + 16*half}")
        if tlb and twhen == 3 and half == 0: touch()
        hstamp(6 + 8*half)
    if ctl and not dbg & 1:
        e.raw("; ---- helper 0 steers the streamers' load depth: workgroups ahead of their group ease off, those behind dig deeper")
        I(f"s_cmp_lg_u32 s{sW}, 0"); I("s_cbranch_scc1 L_cend"); snc = e.snapshot()
        I(f"s_mov_b32 s{sLate}, 0"); I(f"s_mov_b32 s{sExt}, 0"); I(f"s_mov_b32 s{sBt}, 0")
        def late_mode():
            if extb: I(f"s_cmp_lt_u32 s{sPoll}, s{sBt}"); I(f"s_cselect_b32 s{sLate}, 2, 0")
        for mi in range(len(MS)):
            I(f"s_mov_b32 s{sMe}, 0"); I(f"s_mov_b32 s{sBs}, 0")
            e.label(f"L_ctl{mi}")
            I(f"s_sleep {cslp}")
            I(f"s_mov_b32 exec_lo, {hex((0xffff << (16*mi)) & 0xffffffff) if mi < 2 else 0}"); I(f"s_mov_b32 exec_hi, {hex((0xffff << (16*(mi-2))) & 0xffffffff) if mi >= 2 else 0}")
            if not dbg & 4096: I(f"buffer_load_dword v{GA}, v{vPs}, {sr(rW)}, s{sPg} offen {ldflags}")
            I("s_mov_b64 exec, -1")
            I(f"ds_read_b32 v{TM}, v{vZ} offset:{FL+36}")
            I("s_waitcnt vmcnt(0) lgkmcnt(0)")
            I(f"v_xor_b32 v{GA}, v{GA}, v{POl}"); I(f"v_and_b32 v{GA}, 1, v{GA}"); I(f"v_cmp_eq_u32 vcc, 1, v{GA}")
            I(f"v_readfirstlane_b32 s{sPoll}, v{TM}"); I("s_nop 1")
            I(f"s_bfe_u32 s{sCn}, vcc_{'lo' if mi < 2 else 'hi'}, {hex((16 << 16) + 16*(mi % 2))}"); I(f"s_bcnt1_i32_b32 s{sCn}, s{sCn}")
            I(f"s_cmp_lg_u32 s{sMe}, 0"); I(f"s_cbranch_scc1 L_cme{mi}"); sn = e.snapshot()
            I(f"s_cmp_gt_u32 s{sPoll}, {2*MS[mi]-1 if pg else mi}"); I(f"s_cbranch_scc1 L_cpub{mi}"); sn2 = e.snapshot()
            if pg and extb:
                I(f"s_sub_u32 s{sT}, {2*MS[mi]}, s{sPoll}"); I(f"s_mul_i32 s{sT}, s{sT}, {extb}"); I(f"s_add_u32 s{sT}, s{sT}, {2*MS[mi]}")
                I(f"s_cmp_ge_u32 s{sCn}, {cb}"); I(f"s_cselect_b32 s{sT2}, 1, 0"); I(f"s_cmp_gt_u32 s{sT2}, s{sBs}")
                I(f"s_cselect_b32 s{sBt}, s{sT}, s{sBt}"); I(f"s_cselect_b32 s{sExt}, 0, s{sExt}"); I(f"s_mov_b32 s{sBs}, s{sT2}")
                late_mode()
                I(f"s_cmp_lt_u32 s{sPoll}, s{sExt}"); I(f"s_cselect_b32 s{sMd}, 1, s{sLate}")
            elif pg:
                I(f"s_cmp_lt_u32 s{sPoll}, s{sExt}"); I(f"s_cselect_b32 s{sMd}, 1, s{sLate}")
                I(f"s_cmp_ge_u32 s{sCn}, {cb}"); I(f"s_cselect_b32 s{sMd}, 2, s{sMd}")
            elif ext:
                I(f"s_sub_u32 s{sExt}, s{sExt}, 1"); I(f"s_cselect_b32 s{sExt}, 0, s{sExt}"); I(f"s_cselect_b32 s{sMd}, s{sLate}, 1")
                I(f"s_cmp_ge_u32 s{sCn}, {cb}"); I(f"s_cselect_b32 s{sMd}, 2, s{sMd}")
            else: I(f"s_cmp_ge_u32 s{sCn}, {cb}"); I(f"s_cselect_b32 s{sMd}, 2, s{sLate}")
            I(f"v_mov_b32 v{TM}, s{sMd}"); I(f"ds_write_b32 v{vZ}, v{TM} offset:{FL+40}")
            I(f"s_branch L_ctl{mi}")
            e.hists = [[]]
            e.join(f"L_cpub{mi}", sn2)
            I(f"s_mov_b32 s{sMe}, 1"); I(f"s_mov_b32 s{sExt}, 0")
            if not extb: I(f"s_cmp_ge_u32 s{sCn}, {cl}"); I(f"s_cselect_b32 s{sLate}, 2, 0")
            I(f"v_not_b32 v{TM}, v{POl}")
            I(f"s_add_u32 s{sT}, s{sS}, {16*mi}"); I(f"s_lshl_b64 exec, 1, s{sT}")
            if not dbg & 2048: I(f"buffer_store_dword v{TM}, v{vPs}, {sr(rW)}, s{sPg} offen {stflags}")
            I("s_mov_b64 exec, -1")
            e.join(f"L_cme{mi}", sn)
            if pg:
                I(f"s_sub_u32 s{sT}, s{sPoll}, {2*MS[mi] - 1}"); I(f"s_mul_i32 s{sT}, s{sT}, {ext}"); I(f"s_add_u32 s{sT}, s{sT}, s{sPoll}")
                late_mode()
                I(f"s_cmp_lt_u32 s{sCn}, {ct}"); I(f"s_cselect_b32 s{sExt}, s{sT}, s{sExt}")
                I(f"s_cmp_lt_u32 s{sPoll}, s{sExt}"); I(f"s_cselect_b32 s{sMd}, 1, s{sLate}")
                I(f"s_cmp_lt_u32 s{sCn}, {ct}")
            elif ext:
                I(f"s_cmp_lt_u32 s{sCn}, {ct}"); I(f"s_cselect_b32 s{sT}, {ext}, 0"); I(f"s_add_u32 s{sExt}, s{sExt}, s{sT}")
                I(f"s_cmp_lg_u32 s{sExt}, 0"); I(f"s_cselect_b32 s{sMd}, 1, s{sLate}")
                I(f"s_cmp_lt_u32 s{sCn}, {ct}")
            else: I(f"s_cmp_lt_u32 s{sCn}, {ct}"); I(f"s_cselect_b32 s{sMd}, 1, s{sLate}")
            I(f"v_mov_b32 v{TM}, s{sMd}"); I(f"ds_write_b32 v{vZ}, v{TM} offset:{FL+40}")
            I(f"s_cbranch_scc1 L_ctl{mi}")
        if pg:
            if extb: I(f"s_max_u32 s{sExt}, s{sExt}, s{sBt}"); I(f"s_mov_b32 s{sLate}, 0")
            I(f"s_min_u32 s{sExt}, s{sExt}, {2*endm}")
            e.label("L_cext")
            I("s_sleep 4")
            I(f"ds_read_b32 v{TM}, v{vZ} offset:{FL+36}"); I("s_waitcnt lgkmcnt(0)"); I(f"v_readfirstlane_b32 s{sPoll}, v{TM}")
            I(f"s_cmp_lt_u32 s{sPoll}, s{sExt}"); I("s_cbranch_scc1 L_cext")
            I(f"v_mov_b32 v{TM}, s{sLate}"); I(f"ds_write_b32 v{vZ}, v{TM} offset:{FL+40}")
        elif ext:
            e.label("L_cext")
            I(f"s_sub_u32 s{sExt}, s{sExt}, 1"); I("s_cbranch_scc1 L_cdone"); sn = e.snapshot()
            I("s_sleep 36")
            I(f"ds_read_b32 v{TM}, v{vZ} offset:{FL+36}"); I("s_waitcnt lgkmcnt(0)"); I(f"v_readfirstlane_b32 s{sPoll}, v{TM}")
            I(f"s_cmp_le_u32 s{sPoll}, {len(MS)}"); I("s_cbranch_scc1 L_cext")
            e.join("L_cdone", sn)
            I(f"v_mov_b32 v{TM}, s{sLate}"); I(f"ds_write_b32 v{vZ}, v{TM} offset:{FL+40}")
        if otouch & 1: I(f"global_load_ushort v{GO+8}, v{vOut}, s[{sO}:{sO+1}]")
        e.join("L_cend", snc)
    if npoll > 1: I(f"ds_read_b32 v{MKo}, v{vL4} offset:{MK}")
    I("s_waitcnt vmcnt(0) lgkmcnt(0)")
    I("s_barrier")
    e.lgq = []; e.lg_done = 0
    ids = [I(f"ds_read_b64 {vr(TM+2*k, 2)}, v{vT} offset:{k*512}") for k in range(4)]
    for k in range(1, 4):
        e.wait_lg(ids[k])
        I(f"v_add_f32 v{TM}, v{TM}, v{TM+2*k}"); I(f"v_add_f32 v{TM+1}, v{TM+1}, v{TM+2*k+1}")
    for k in range(2): I(f"v_bfi_b32 v{TM+k}, 1, v{NOo+k}, v{TM+k}")
    if not dbg & 1024: I(f"buffer_store_dwordx2 {vr(TM, 2)}, v{vSt}, {sr(rW)}, s{sOS} offen {stflags}")
    hstamp(16)
    if npoll > 1:
        I(f"s_cmp_ge_u32 s{sW}, {npoll}"); I("s_cbranch_scc1 L_hend")
        sn = e.snapshot()
        X0 = 48; X1 = 50
        I(f"s_mov_b64 s[{X0}:{X0+1}], -1"); I(f"s_mov_b64 s[{X1}:{X1+1}], -1")
        for k in range(1, npoll):
            I(f"s_cmp_lt_u32 s{sW}, {k}"); I("s_cbranch_scc1 L_opoll"); I(f"s_sleep {pstag}")
        e.label("L_opoll")
        if oslp: I(f"s_sleep {oslp}")
        e.vmq = []; e.vm_done = 0
        ids = []
        for k in range(2):
            I(f"s_or_b64 exec, s[{(X0, X1)[k]}:{(X0, X1)[k]+1}], 1")
            ids.append(I(f"buffer_load_dwordx4 {vr(GA+8+4*k)}, v{vFo}, {sr(rW)}, s{sFo2 if k else sFo} offen {ldflags}"))
        I("s_mov_b64 exec, -1")
        for k in range(8):
            e.wait_vm(ids[k//4]); I(f"v_alignbit_b32 v{TM}, v{GA+8+k}, v{TM if k else vZ}, 1")
        I(f"v_xor_b32 v{TM}, v{TM}, v{MKo}"); I(f"v_bfe_u32 v{TM+1}, v{TM}, 24, 4"); I(f"v_lshrrev_b32 v{TM}, 28, v{TM}")
        I(f"v_cmp_ne_u32 s[{X0}:{X0+1}], 15, v{TM+1}"); I(f"v_cmp_ne_u32 s[{X1}:{X1+1}], 15, v{TM}")
        for k in range(8): I(f"v_and_b32 v{GA+k}, -2, v{GA+8+k}")
        I(f"s_or_b64 vcc, s[{X0}:{X0+1}], s[{X1}:{X1+1}]")
        if not dbg & (1 + 256): I("s_cbranch_scc1 L_opoll")
        I(f"v_mov_b32 v{TM+1}, 1"); I("s_mov_b64 exec, 1"); I(f"ds_wrxchg_rtn_b32 v{TM}, v{vZ}, v{TM+1} offset:{FL+44}"); I("s_mov_b64 exec, -1")
        for m in range(4): I(f"v_add_f32 v{GA+m}, v{GA+m}, v{GA+4+m}")
    else:
        I(f"s_cmp_lg_u32 s{sW}, 0"); I("s_cbranch_scc1 L_hend")
        sn = e.snapshot()
        e.label("L_opoll")
        if oslp: I(f"s_sleep {oslp}")
        e.vmq = []; e.vm_done = 0
        ids = [I(f"buffer_load_dwordx4 {vr(GA+4*k)}, v{vFo}, {sr(rW)}, s{sFo2 if k else sFo} offen {ldflags}") for k in range(2)]
        for k in range(8):
            e.wait_vm(ids[k//4]); I(f"v_alignbit_b32 v{TM}, v{GA+k}, v{TM if k else vZ}, 1")
        I(f"v_xor_b32 v{TM}, v{TM}, v{MKo}"); I(f"v_cmp_ne_u32 vcc, 0xff000000, v{TM}")
        for k in range(8): I(f"v_and_b32 v{GA+k}, -2, v{GA+k}")
        if not dbg & (1 + 256): I("s_cbranch_vccnz L_opoll")
        for m in range(4): I(f"v_add_f32 v{GA+m}, v{GA+m}, v{GA+4+m}")
    rowsum(GA)
    I(f"v_add_f32_dpp v{GA}, v{GA}, v{GA} row_ror:8 row_mask:0xf bank_mask:0xf")
    I(f"v_cvt_pk_bf16_f32 v{GA}, v{GA}, v{GA}")
    if npoll > 1:
        I("s_waitcnt lgkmcnt(0)"); I(f"v_readfirstlane_b32 s{sPoll}, v{TM}"); I(f"s_cmp_lg_u32 s{sPoll}, 0"); I("s_cbranch_scc1 L_hend"); sn += e.snapshot()
    I("s_mov_b32 exec_lo, 0x00ff00ff"); I("s_mov_b32 exec_hi, 0x00ff00ff")
    I(f"global_store_short v{vOut}, v{GA}, s[{sO}:{sO+1}] {oflags}")
    I("s_mov_b64 exec, -1")
    e.join("L_hend", sn)
    if ts: ts_out(0x600000, 0x700000)
    e.label("L_end"); I("s_endpgm")
    if codepf:
        e.raw(".p2align 8"); e.raw(".fill 2048, 4, 0xbf800000")
    e.raw('.section .rodata,"a"'); e.raw(".p2align 6"); e.raw(f".amdhsa_kernel {KN}")
    e.raw("  .amdhsa_next_free_vgpr 256"); e.raw("  .amdhsa_next_free_sgpr 72"); e.raw("  .amdhsa_accum_offset 256")
    e.raw("  .amdhsa_group_segment_fixed_size 0"); e.raw("  .amdhsa_kernarg_size 64"); e.raw("  .amdhsa_user_sgpr_count 2")
    e.raw("  .amdhsa_user_sgpr_kernarg_segment_ptr 1"); e.raw("  .amdhsa_system_sgpr_workgroup_id_x 1")
    e.raw("  .amdhsa_float_denorm_mode_32 3"); e.raw(".end_amdhsa_kernel")
    return e.text(), e

if __name__ == "__main__":
    import os
    os.makedirs("k", exist_ok=True)
    names = []
    for spec in sys.argv[1:]:
        kw = {}
        for kv in spec.split(","):
            k, v = kv.split("=")
            kw[k] = v.replace("+", " ").replace("none", "") if (k.endswith("flags") or k == "ms") else int(v)
        fn = "k/v7_" + spec.replace(",", "_").replace("=", "").replace("+", "") + ".s"
        txt, e = gen(**kw)
        open(fn, "w").write(txt); names.append("work/" + fn)
        print(fn, "nops", e.nnops, "lines", len(e.out), file=sys.stderr)
    print(" ".join(names))
```

```python
import sys, math, struct
from asmlib import Emitter
KN = "standalone__low_rank_proj_linformer__decode_kernel"
HEADER = open('standalone__low_rank_proj_linformer__decode.s.ref').read().split('; Override launch')[0]

DOC = """;
;
; (neighbouring slices interleave their blocks and so tend to share open DRAM pages).
;
"""

def gen(R=6, R0=None, t0=0, R1=None, t1=512, ts=0, bgrate=8, codepf=0, kvflags="nt", efflags="", fdepth=3,
        slp=32, gslp=24, lslp=8, oslp=2, tB0=56, hperm=0, dbg=0, qfirst=0, prio=0, eb=0, er=0, tBi=6, bar=0, slp0=0, pf=0, pace=1, ldflags="sc1", stflags="sc1", Rp=0, RV=None, oflags="", lay=0, sx=0, ms="44 54", Rb=7, Rt=5, cb=6, ct=8, cl=11, tc0=104, cslp=8, ctl=1, psh=4, pre=4, edel=10, kdel=2, spf=0, pat=0, tfree=16, Rf=16, tlb=0, elds=1, edepth=3, erot=1, tE=93, wsoff=0, sb=0, ext=4, endm=61, oearly=3, erow=0, fpf=0, twhen=0, otouch=0, skew=0, pg=1, extb=0, npoll=1, pstag=4, Rb2=0, tc1=464, kk=8, kx=0, frot=1, early=3, mA=17, mB=33, exte=10, blen=24, tSel=72, fd0=0, lb="01t2tt3", hb="GGGhGh", late=1, esl=4, ew=8, lw=10, eord=1, fa=2, fls=10, sco=0, oo=8, mo=4):
    e = Emitter(); I = e.I
    MS = [int(x) for x in str(ms).split()] if ctl else []
    assert pg and not extb and ctl and len(MS) <= 2 and tSel + 6 < tc0
    sW=3; sQ=4; sK=6; sV=8; sE=10; sF=12; sO=14; sD=16; sWS=18
    rK=20; rV=24; rE=28; rF=28; rW=36
    sG=40; sS=41; sT=42; sT2=43; sOff=44; sOffX=46; sGa=47; sM1=48; sM0=50; sMB=52; sSl=53; sCS=54; sPoll=55; sOP=56; sOP2=57; sTs=58; sPC=60
    sOS=32; sGa2=33
    PSZ=576; HSZ=2*PSZ; WSZ=4*HSZ; SC=4*WSZ; OB=SC+4096; PB=OB+8192; FL=PB+512; MK=FL+128; EB=31744; LDS=EB+131072 if elds else FL+128
    MBOX=mo << 17; PRG=MBOX + 0x8000; OPART=oo << 17; SCO=sco << 17
    def vr(a, n=4): return f"v[{a}:{a+n-1}]"
    def ar(a, n=4): return f"v[{128+a}:{128+a+n-1}]"
    def sr(a, n=4): return f"s[{a}:{a+n-1}]"
    vKV=1; vE=2; vQ=4; vWr=5; vSCw=6; vL8=7; vOw=8; vT=9; vTS=10
    wg_=13; c_=14
    Q=16; VA=16; P=32; PK=40; SEL=44; AD=52; WR=60; KA=64; RING=96
    HS = (64 << 20) if hperm else (4 << 20)
    QS = 4096 if hperm else 256
    TP = [i for i, x in enumerate(lb) if x == 't']; SP = [lb.index(str(k)) for k in range(4)]
    GP = [i for i, x in enumerate(hb) if x == 'G']; HP = [i for i, x in enumerate(hb) if x == 'h']
    def scat(v, pos): return sum(((v >> k) & 1) << p for k, p in enumerate(pos))
    BOFF = [scat(b, TP) for b in range(8)]; HOFF = [scat(h, HP) for h in range(4)]
    NREC = (HOFF[3] << 22) + (BOFF[7] + 1)*32768
    def sscat(dst, tmp, src, pos, unit, first=0):
        k = 0; started = False
        while k < len(pos):
            n = 1
            while k + n < len(pos) and pos[k+n] == pos[k] + n: n += 1
            r = tmp if started else dst
            I(f"s_bfe_u32 s{r}, s{src}, {hex((n << 16) + k + first)}"); I(f"s_lshl_b32 s{r}, s{r}, {pos[k] + unit}")
            if started: I(f"s_or_b32 s{dst}, s{dst}, s{tmp}")
            started = True; k += n
    def slice_off(dst, tmp, unit): sscat(dst, tmp, sS, SP, unit)

    e.raw(HEADER.rstrip())
    e.raw(f"; @launch grid=(256,1,1) block=(512,1,1) lds={LDS}")
    e.raw(DOC.rstrip())
    e.raw('.amdgcn_target "amdgcn-amd-amdhsa--gfx950"'); e.raw(".text"); e.raw(f".globl {KN}"); e.raw(".p2align 8")
    e.raw(f".type {KN},@function"); e.label(KN)
    I("s_cmp_ge_u32 s2, 0x100"); I("s_cbranch_scc1 L_end")
    I(f"s_load_dwordx16 s[4:19], s[0:1], 0")
    if ts: I(f"s_memrealtime s[{sTs}:{sTs+1}]")
    I(f"v_readfirstlane_b32 s{sW}, v0")
    I(f"v_lshrrev_b32 v{wg_}, 4, v0")
    I(f"v_and_b32 v{c_}, 15, v0")
    I(f"v_lshlrev_b32 v{vQ}, 4, v{c_}")
    if sx == 1: I(f"s_lshr_b32 s{sS}, s2, 4"); I(f"s_and_b32 s{sG}, s2, 15")
    elif sx == 2:
        I(f"s_and_b32 s{sS}, s2, 1"); I(f"s_lshl_b32 s{sS}, s{sS}, 3"); I(f"s_bfe_u32 s{sG}, s2, 0x30003"); I(f"s_or_b32 s{sS}, s{sS}, s{sG}")
        I(f"s_bfe_u32 s{sG}, s2, 0x20001"); I(f"s_lshr_b32 s{sT}, s2, 6"); I(f"s_lshl_b32 s{sT}, s{sT}, 2"); I(f"s_or_b32 s{sG}, s{sG}, s{sT}")
    else: I(f"s_lshr_b32 s{sG}, s2, 4"); I(f"s_and_b32 s{sS}, s2, 15")
    I(f"s_lshr_b32 s{sW}, s{sW}, 6")
    if skew:
        I(f"s_mul_i32 s{sT}, s2, 37"); I(f"s_and_b32 s{sT}, s{sT}, {skew >> 4}"); I("s_cbranch_scc1 L_nosk"); sn = e.snapshot()
        if not skew & 1: I(f"s_cmp_lt_u32 s{sW}, 4"); I("s_cbranch_scc1 L_nosk"); sn += e.snapshot()
        if not skew & 2: I(f"s_cmp_ge_u32 s{sW}, 4"); I("s_cbranch_scc1 L_nosk"); sn += e.snapshot()
        if skew & 4: I(f"s_bitcmp0_b32 s{sW}, 0"); I("s_cbranch_scc1 L_nosk"); sn += e.snapshot()
        for _ in range(12): I("s_sleep 127")
        e.join("L_nosk", sn)
    I(f"s_cmp_ge_u32 s{sW}, 4"); I("s_cbranch_scc1 L_helper")
    sn_entry = e.snapshot()
    if pat:
        I(f"v_and_b32 v{vKV}, 3, v{wg_}"); I(f"v_lshl_add_u32 v{vKV}, v{vKV}, 9, v{vQ}"); I(f"s_lshl_b32 s{sT}, s{sW}, 12"); I(f"v_add_u32 v{vKV}, s{sT}, v{vKV}")
    else: I(f"v_lshl_add_u32 v{vKV}, v{wg_}, 11, v{vQ}")
    if not elds:
        I(f"v_lshlrev_b32 v{vE}, 15, v{c_}")
        I(f"v_lshl_add_u32 v{vE}, v{wg_}, 4, v{vE}")
    slice_off(sOffX, sT, 15)
    sscat(sT2, sT, sG, GP, 8)
    I(f"s_lshl_b32 s{sT}, s{sT2}, 14"); I(f"s_add_u32 s{sT}, s{sT}, s{sOffX}")
    I(f"s_mov_b32 s{rK+2}, {hex(NREC)}"); I(f"s_mov_b32 s{rK+3}, 0x20000")
    I(f"s_mov_b32 s{sOff}, 0")
    if not elds:
        I(f"s_lshl_b32 s{sOS}, s{sS}, 11")
        I(f"s_sub_u32 s{rE+2}, 0x200000, s{sOS}"); I(f"s_mov_b32 s{rE+3}, 0x20000")
    if prio: I(f"s_setprio {prio}")
    I("s_waitcnt lgkmcnt(0)")
    if ts == 2: I("s_memrealtime s[64:65]")
    I(f"s_add_u32 s{rK}, s{sK}, s{sT}"); I(f"s_addc_u32 s{rK+1}, s{sK+1}, 0")
    pool = [('v', RING + 4*k, 0, 10**9) for k in range(8)] + [('v', SEL + 4*k, 0, tSel - 4) for k in range(0 if (kdel and not elds) else 5)] + \
           [('v', KA + 16 + 4*k, 0, 70) for k in range(4)] + [('a', 128 + 4*k, 258, 10**9) for k in range(32)]
    busy = set(); slot = {}; ldid = {}; nxt = [0]
    def issue(now):
        t = nxt[0]
        if t >= 512: return False
        cand = [p for p in pool if p not in busy and p[2] <= now and t <= p[3] and (p[0] == 'v' or t >= 256)]
        if not cand: return False
        p = cand[0]; busy.add(p); slot[t] = p; nxt[0] += 1
        ph, h, b, j = t // 256, (t // 64) % 4, (t // 8) % 8, t % 8
        if pat:
            if j % 4 == 0 and t > 0: I(f"s_mov_b32 s{sOff}, {hex((HOFF[h] << 22) + BOFF[b]*32768 + (j//4)*16384)}")
            off = (j & 1)*256 + ((j >> 1) & 1)*2048
        else:
            if j == 0 and t > 0: I(f"s_mov_b32 s{sOff}, {hex((HOFF[h] << 22) + BOFF[b]*32768)}")
            off = j*256
        ldid[t] = I(f"buffer_load_dwordx4 v[{p[1]}:{p[1]+3}], v{vKV}, {sr(rV if ph else rK)}, s{sOff} offen offset:{off} {kvflags}")
        return True
    def target(t):
        if R0 is not None and t < t0: return R0
        if ctl and Rf and t >= 512 - tfree: return Rf
        if ctl and Rb2 and t >= tc1: return Rb2
        if ctl and t >= tc0: return Rb
        if R1 is not None and t >= t1: return R1
        r = RV if (RV is not None and t >= 256) else R
        return r + (1 if Rp and (t // 16) % Rp == 0 else 0)
    qid = []
    def loadq(h):
        if h == 0: I(f"s_add_u32 s{sQ}, s{sQ}, s{sT2}")
        else: I(f"s_add_u32 s{sQ}, s{sQ}, {(HOFF[h] - HOFF[h-1])*256}")
        I(f"s_addc_u32 s{sQ+1}, s{sQ+1}, 0")
        qid.append(I(f"global_load_dwordx4 {vr(Q+4*h)}, v{vQ}, s[{sQ}:{sQ+1}]"))
    if qfirst == 1: loadq(0)
    for k in range(target(0)):
        assert issue(0)
        if k == 0 and qfirst == 2: loadq(0)
    if qfirst == 0: loadq(0)
    if not elds: I(f"s_add_u32 s{rE}, s{sE}, s{sOS}"); I(f"s_addc_u32 s{rE+1}, s{sE+1}, 0")
    eid = {}
    def issueE(b, rt):
        if dbg & 8 and b > 0: eid[(b, rt)] = eid[(0, 0)]; return
        I(f"s_mov_b32 s{sOffX}, {hex(rt*524288)}")
        eid[(b, rt)] = I(f"buffer_load_dwordx4 {ar(16*b + 4*rt)}, v{vE}, {sr(rE)}, s{sOffX} offen offset:{b*256} {efflags}")
    eq = [] if elds else [(b, rt) for b in range(8) for rt in range(4)]
    for _ in range(eb): issueE(*eq.pop(0))
    I(f"s_add_u32 s{rV}, s{sV}, s{sT}"); I(f"s_addc_u32 s{rV+1}, s{sV+1}, 0")
    I(f"s_mov_b32 s{rV+2}, {hex(NREC)}"); I(f"s_mov_b32 s{rV+3}, 0x20000")
    for k in range(pre):
        e.wait_vm(ldid[k]); assert issue(0)
    if ts: I(f"v_mov_b32 v{vTS}, s{sTs}"); I(f"v_mov_b32 v{vTS+2}, s{sTs}")
    if ts == 2:
        I("s_memrealtime s[66:67]"); I("s_waitcnt lgkmcnt(0)"); I(f"v_writelane_b32 v{vTS}, s64, 62"); I(f"v_writelane_b32 v{vTS}, s66, 63")

    bg = []
    def drain(step, n=None):
        k = 0
        while bg and bg[0][0] <= step and (n is None or k < n):
            bg.pop(0)[1](); k += 1
    def push(nb, *fs):
        for f in fs: bg.append((nb, f))
    def L(s, **kw): return lambda: I(s, **kw)
    def selectors(out, SEL, t1, t2, t3, t4):
        out(f"v_and_b32 v{t1}, 7, v{c_}")
        out(f"v_and_b32 v{t2}, 1, v{t1}"); out(f"v_lshrrev_b32 v{t1}, 1, v{t1}")
        out(f"v_cmp_eq_u32 vcc, 1, v{t2}")
        out(f"v_mov_b32 v{t2}, 0x0c0c0100"); out(f"v_mov_b32 v{t3}, 0x01000c0c"); out(f"v_cndmask_b32 v{t2}, v{t2}, v{t3}, vcc")
        out(f"v_mov_b32 v{t3}, 0x0c0c0302"); out(f"v_mov_b32 v{t4}, 0x03020c0c"); out(f"v_cndmask_b32 v{t3}, v{t3}, v{t4}, vcc")
        out(f"v_mov_b32 v{t4}, 0x0c0c0c0c")
        for m in range(4):
            out(f"v_cmp_eq_u32 vcc, {m}, v{t1}")
            out(f"v_cndmask_b32 v{SEL+m}, v{t4}, v{t2}, vcc"); out(f"v_cndmask_b32 v{SEL+4+m}, v{t4}, v{t3}, vcc")
    def B(s): push(12, L(s))
    g = 3; ta = 9; tb = 15
    B(f"v_and_b32 v{g}, 3, v{wg_}")
    B(f"v_lshrrev_b32 v{ta}, 2, v{c_}"); B(f"v_and_b32 v{tb}, 3, v{c_}")
    B(f"v_lshlrev_b32 v{vSCw}, 6, v{ta}"); B(f"v_lshl_add_u32 v{vSCw}, v{g}, 4, v{vSCw}"); B(f"v_lshl_add_u32 v{vSCw}, v{tb}, 2, v{vSCw}")
    B(f"s_lshl_b32 s{sT}, s{sW}, 9"); B(f"s_add_u32 s{sT2}, s{sT}, {SC}"); B(f"v_add_u32 v{vSCw}, s{sT2}, v{vSCw}")
    B(f"v_lshrrev_b32 v{ta}, 3, v{c_}"); B(f"s_mul_i32 s{sT2}, s{sW}, {WSZ}")
    B(f"v_mul_u32_u24 v{vWr}, {PSZ}, v{ta}"); B(f"v_lshl_add_u32 v{vWr}, v{g}, 4, v{vWr}"); B(f"v_add_u32 v{vWr}, s{sT2}, v{vWr}")
    B(f"v_lshrrev_b32 v{ta}, 1, v{g}"); B(f"v_and_b32 v{tb}, 1, v{g}")
    B(f"v_lshlrev_b32 v{vOw}, 5, v{c_}"); B(f"v_lshl_add_u32 v{vOw}, v{tb}, 4, v{vOw}"); B(f"v_lshl_add_u32 v{vOw}, v{ta}, 3, v{vOw}")
    B(f"s_add_u32 s{sT2}, s{sT}, {OB}"); B(f"v_add_u32 v{vOw}, s{sT2}, v{vOw}")
    B(f"s_mov_b32 s{sM1}, 0xcccccccc"); B(f"s_mov_b32 s{sM1+1}, 0xcccccccc"); B(f"s_mov_b32 s{sM0}, 0xaaaaaaaa"); B(f"s_mov_b32 s{sM0+1}, 0xaaaaaaaa")
    if elds:
        B(f"v_xor_b32 v{ta}, v{wg_}, v{c_}"); B(f"v_lshlrev_b32 v{ta}, 4, v{ta}"); B(f"v_lshl_add_u32 v{ta}, v{c_}, {11 if erow else 8}, v{ta}")
        B(f"v_add_u32 v208, {EB}, v{ta}"); B(f"v_add_u32 v209, {EB + 65536}, v{ta}")
    vZs = 15; vPg = 9
    B(f"v_mov_b32 v{vZs}, 0")
    B(f"s_cmp_eq_u32 s{sW}, 0"); B(f"s_cselect_b32 s{sT}, 0, 16"); B(f"v_mov_b32 v{vPg}, s{sT}")
    if ts: B(f"v_and_b32 v{vL8}, 63, v0"); B(f"v_lshlrev_b32 v{vL8}, 3, v{vL8}")
    st = {}
    def task_kreduce(h, nb):
        X = KA + 16*(h % 2); half, hh = h // 2, h % 2
        for k in range(8): push(nb, L(f"v_add_f32_dpp v{X+k}, v{X+k}, v{X+k} row_ror:8 row_mask:0xf bank_mask:0x3"))
        for k in range(8): push(nb, L(f"v_add_f32_dpp v{X+k}, v{X+k+8}, v{X+k+8} row_ror:8 row_mask:0xf bank_mask:0xc"))
        for k in range(4): push(nb, L(f"v_add_f32_dpp v{X+k}, v{X+k}, v{X+k} row_shl:4 row_mask:0xf bank_mask:0x5"))
        for k in range(4): push(nb, L(f"v_add_f32_dpp v{X+k}, v{X+k+4}, v{X+k+4} row_shr:4 row_mask:0xf bank_mask:0xa"))
        for k in range(4): push(nb, L(f"v_add_f32_dpp v{X+k}, v{X+k}, v{X+k} quad_perm:[2,3,0,1] row_mask:0xf bank_mask:0xf"))
        for k in range(2): push(nb, L(f"v_cndmask_b32 v{X+k}, v{X+k}, v{X+k+2}, s[{sM1}:{sM1+1}]"))
        for k in range(2): push(nb, L(f"v_add_f32_dpp v{X+k}, v{X+k}, v{X+k} quad_perm:[1,0,3,2] row_mask:0xf bank_mask:0xf"))
        push(nb, L(f"v_cndmask_b32 v{X}, v{X}, v{X+1}, s[{sM0}:{sM0+1}]"))
        push(nb, L(f"v_min_u32 v{X}, -2, v{X}"))
        def wr(): st[('scw', h)] = I(f"ds_write_b32 v{vSCw}, v{X} offset:{half*2048 + hh*256}")
        push(nb, wr)
        if hh == 1 and bar:
            def barf(): e.wait_lg(st[('scw', h)]); I("s_barrier")
            push(nb + 6, barf)
    def task_oflush(h, nb):
        x = VA + 4*h
        push(nb, L(f"v_permlane32_swap_b32 v{x}, v{x+2}"), L(f"v_permlane32_swap_b32 v{x+1}, v{x+3}"),
                 L(f"v_add_f32 v{x}, v{x}, v{x+2}"), L(f"v_add_f32 v{x+1}, v{x+1}, v{x+3}"))
        def wr(): st[('ow', h)] = I(f"ds_write_b64 v{vOw}, {vr(x, 2)} offset:{h*2048}")
        push(nb, wr)
    def stamp(idx):
        I(f"s_memrealtime s[{sTs}:{sTs+1}]"); I("s_waitcnt lgkmcnt(0)"); I(f"v_writelane_b32 v{vTS}, s{sTs}, {idx}")
    wrid = {}
    WRB = [WR, P]
    def readW(h, b):
        wrid[(h, b)] = I(f"ds_read_b128 {vr(WRB[(h*8 + b) % 2])}, v{vWr} offset:{h*HSZ + b*64}")
    def buildA(tv):
        h, b, j = tv // 64, (tv // 8) % 8, tv % 8
        e.wait_lg(wrid[(h, b)])
        x = WRB[(h*8 + b) % 2] + j//2
        for mm in range(4): I(f"v_perm_b32 v{AD+4*(tv%2)+mm}, v{x}, v{x}, v{SEL+4*(j%2)+mm}")
    def waitW(half):
        if bar: I("s_barrier"); return
        x = (WR, KA, EF)[half]
        e.wait_lg(st['fl'])
        sn = e.snapshot()
        e.label(f"L_wchk{half}")
        I(f"v_and_b32 v{x}, v{x}, v{x+1}"); I(f"v_and_b32 v{x+2}, v{x+2}, v{x+3}"); I(f"v_and_b32 v{x}, v{x}, v{x+2}")
        I(f"v_readfirstlane_b32 s{sPoll}, v{x}")
        I(f"s_cmp_lg_u32 s{sPoll}, 0"); I(f"s_cbranch_scc1 L_wok{half}")
        sn = e.snapshot()
        I("s_sleep 2")
        I(f"ds_read_b128 {vr(x)}, v{vZs} offset:{FL + (0, 16, 64)[half]}", counted=False); I("s_waitcnt lgkmcnt(0)")
        I(f"s_branch L_wchk{half}")
        e.hists = [[]]
        e.join(f"L_wok{half}", sn)
        if half < 2: I("s_cmp_lg_u32 0, 0")
    STASH = 128; EF = 192; vEr = 208; vCt = 2
    def pkreg(h, b):
        if elds: return STASH + 32*h + 4*b if (h == 0 or (late and h == 1)) else PK
        return SEL + 4*(b % 5) if (kdel and h == 0) else PK
    erd = {}
    def readE(b):
        for rt in range(4):
            if erow: erd[rt] = I(f"ds_read_b128 {vr(EF+4*rt)}, v{vEr + rt//2} offset:{(rt%2)*32768 + b*256}")
            else: erd[rt] = I(f"ds_read_b128 {vr(EF+4*rt)}, v{vEr + b//4} offset:{(b%4)*16384 + rt*4096}")
    def kmfma(h, b):
        if not elds: e.wait_vm(*[eid[(b, rt)] for rt in range(4)])
        for rt in range(4):
            d = vr(KA + 16*(h%2) + 4*rt)
            if elds: e.wait_lg(erd[rt])
            I(f"v_mfma_f32_16x16x32_bf16 {d}, {vr(EF+4*rt) if elds else ar(16*b+4*rt)}, {vr(pkreg(h, b))}, {d if b else '0'}")

    for t in range(512):
        ph, h, b, j = t // 256, (t // 64) % 4, (t // 8) % 8, t % 8
        p = slot[t]
        if j == 0: e.raw(f"; ---- {'V' if ph else 'K'}, head {h}, block {b}")
        if ph == 0:
            s = p[1]
            e.wait_vm(ldid[t], qid[h])
            I(f"v_dot2_f32_bf16 v{P+j}, v{s}, v{Q+4*h}, 0")
            for m in range(1, 4): I(f"v_dot2_f32_bf16 v{P+j}, v{s+m}, v{Q+4*h+m}, v{P+j}")
        else:
            tv = t - 256
            e.wait_vm(ldid[t])
            d = vr(VA + 4*h)
            I(f"v_mfma_f32_16x16x32_bf16 {d}, {vr(AD+4*(tv%2))}, v[{p[1]}:{p[1]+3}], {d if (b or j) else '0'}")
        busy.discard(p)
        if er > 0:
            for _ in range(er):
                if eq: issueE(*eq.pop(0))
        elif er < 0:
            if j == 0 or t == 1:
                for _ in range(4):
                    if eq: issueE(*eq.pop(0))
        elif eq and ((t < 2 and not eb and not kdel) or (j % 2 == 0 and t >= edel)):
            issueE(*eq.pop(0))
            if t < 2 and eq and not eb and not kdel: issueE(*eq.pop(0))
        if t in (20, 22, 24): loadq((t - 18)//2)
        k = 0
        while nxt[0] - (t + 1) < target(t + 1) and k < 2 and nxt[0] < 512:
            if ctl and t + 1 >= tc0 and t < 512 - tfree:
                I(f"s_cbranch_vccnz L_is{nxt[0]}"); sn = e.snapshot()
                I(f"s_waitcnt vmcnt({(RV or R)-1})"); I(f"s_cbranch_scc0 L_is{nxt[0]}"); sn += e.snapshot()
                I(f"s_waitcnt vmcnt({Rt-1})")
                e.join(f"L_is{nxt[0]}", sn)
            if not issue(t): break
            k += 1
        if ctl and t == tc0 - 2: I("s_mov_b64 vcc, 0"); I("s_cmp_lg_u32 0, 0")
        if ctl and t >= tc0 and t < 512 - tfree:
            if pg and j % 4 == 0:
                I(f"v_mov_b32 v{vCt+1}, {t // 4}"); I(f"ds_write_b32 v{vPg}, v{vCt+1} offset:{FL+36}")
            if not pg and ext and j == 0 and t // 8 == endm:
                I(f"v_mov_b32 v{vCt+1}, {len(MS) + 1}"); I(f"ds_write_b32 v{vPg}, v{vCt+1} offset:{FL+36}")
            if not pg and j == 0 and t // 8 in MS:
                I(f"v_mov_b32 v{vCt+1}, {MS.index(t//8) + 1}"); I(f"ds_write_b32 v{vPg}, v{vCt+1} offset:{FL+36}")
            if j % 4 == 1: st['md'] = I(f"ds_read_b32 v{vCt}, v{vZs} offset:{FL+40}")
            if j % 4 == 3:
                e.wait_lg(st['md']); I(f"v_readfirstlane_b32 s{sPoll}, v{vCt}")
                I(f"s_cmp_ge_u32 s{sPoll}, {hex((t//4 + 2) << 8)}"); I(f"s_cselect_b32 s{sPoll}, s{sPoll}, 0")
                I(f"s_bitcmp1_b32 s{sPoll}, 1"); I("s_cselect_b64 vcc, -1, 0"); I(f"s_bitcmp1_b32 s{sPoll}, 0")
        assert t == 511 or nxt[0] > t + 1
        if 1 <= t <= 256 and j % 2 == 0:
            jp = (j - 2) % 8
            tp = t - 2
            I(f"v_cvt_pk_bf16_f32 v{pkreg(tp // 64, (tp // 8) % 8)+jp//2}, v{P+jp}, v{P+jp+1}")
        if elds:
            if t == tE - 3: st['fl'] = I(f"ds_read_b128 {vr(EF)}, v{vZs} offset:{FL + 64}")
            if t == tE: waitW(2)
            if late:
                if 94 <= t < 126 and j in (2, 6): readE((t - 94)//4)
                if 96 <= t < 128 and j in (1, 5) and t != 125:
                    kmfma(1, (t - 97)//4); kmfma(0, (t - 97)//4)
                if 128 <= t < 256 and j == 6: readE(b)
            elif 64 <= t < 256 and j == 6: readE(b)
        if 8 <= t <= 257 and j == 1 and not ((kdel or elds) and t - 8 < (120 if late else 64)):
            tp = t - 8; kmfma((tp // 64) % 4, (tp // 8) % 8)
            if elds and tp // 64 == 1:
                kmfma(0, (tp // 8) % 8)
                if b == 0: task_kreduce(0, t + 1)
            if b == 0: task_kreduce((tp // 64) % 4, t + 1)
        if kdel and not elds and j == 3 and 0 <= t // 8 - 1 - kdel < 8:
            kmfma(0, t // 8 - 1 - kdel)
            if t // 8 - 1 - kdel == 7: task_kreduce(0, t + 1)
        if t == tBi: I("s_barrier")
        if t in (250, 374) and not bar:
            st['fl'] = I(f"ds_read_b128 {vr(WR if t == 250 else KA)}, v{vZs} offset:{FL + (16 if t > 250 else 0)}")
        if t == tSel: selectors(lambda s: push(t, L(s)), SEL, AD, AD+1, AD+2, AD+3)
        if t >= 253:
            tn = t + 1 - 256
            if t == 253:
                assert not bg
                waitW(0); readW(0, 0)
            if 0 <= tn < 256:
                if tn % 8 == 2 and tn + 6 < 256:
                    hb = tn // 8 + 1
                    if hb == 16:
                        assert not bg
                        waitW(1)
                    readW(hb // 8, hb % 8)
                buildA(tn)
        if ph == 1 and t % 64 == 2 and h > 0: task_oflush(h - 1, t)
        drain(t, bgrate)
        if ts == 1 and j == 7: stamp(t // 8)
        if ts == 2 and t < 40: stamp(t)
        if ts == 2 and t >= 492: stamp(t - 452)
    drain(10**9)
    task_oflush(3, 0); drain(10**9)
    e.wait_lg(st[('ow', 3)])
    I("s_barrier")
    def ts_out(base_hdr, base_blk):
        I(f"s_memrealtime s[{sTs}:{sTs+1}]"); I("s_getreg_b32 s62, hwreg(HW_REG_XCC_ID)"); I("s_waitcnt lgkmcnt(0)")
        I(f"v_writelane_b32 v{vTS+2}, s{sTs}, 4"); I(f"v_writelane_b32 v{vTS+2}, s62, 5"); I(f"v_writelane_b32 v{vTS+2}, s{sW}, 7")
        I(f"s_lshl_b32 s{sT}, s2, 2"); I(f"s_add_u32 s{sT}, s{sT}, s{sW}"); I(f"s_lshl_b32 s{sT2}, s{sT}, 8"); I(f"s_add_u32 s{sT2}, s{sT2}, {hex(base_blk)}")
        I(f"v_lshrrev_b32 v{vT}, 1, v{vL8}"); I(f"v_add_u32 v{vTS+1}, s{sT2}, v{vT}"); I(f"global_store_dword v{vTS+1}, v{vTS}, s[{sWS}:{sWS+1}]")
        I(f"s_lshl_b32 s{sT2}, s{sT}, 5"); I(f"s_add_u32 s{sT2}, s{sT2}, {hex(base_hdr)}"); I(f"v_add_u32 v{vTS+1}, s{sT2}, v{vT}")
        I("s_mov_b64 exec, 0xff"); I(f"global_store_dword v{vTS+1}, v{vTS+2}, s[{sWS}:{sWS+1}]")
    if ts: ts_out(0x400000, 0x500000)
    I("s_endpgm")

    e.hists = [[]]; e.vmq = []; e.vm_done = 0; e.lgq = []; e.lg_done = 0
    e.raw(".p2align 6")
    e.join("L_helper", sn_entry)
    vF=1; vZ=2; vL16=3; vWw=5; vPm=6; vPw=8; vCh=15
    GA=16; PP=48; PD=56; AW=64; TM=72; SELH=84
    NOo=92; NOs=94; MOm=98; NOm=102; MKo=103; MKg=104; MKc=105; vOut=106; vFo=107; vL4=108; vG=109; POl=111; vPs=112; GO=116; sPg=64; sCn=65; sMe=66; sMd=67; sLate=68; sPr=69; sVm=70; CT=124
    sHg=34; sMW=35; sFo=62; sFo2=63
    I(f"s_and_b32 s{sW}, s{sW}, 3")
    g = TM; ta = TM+1; tb = TM+2; tc = TM+3; td = TM+4
    I(f"v_and_b32 v{g}, 3, v{wg_}")
    def touch():
        I(f"s_lshl_b32 s{sT}, s{sG}, {22 if hperm else 24}"); I(f"s_lshl_b32 s{sT2}, s{sS}, 18"); I(f"s_add_u32 s{sT}, s{sT}, s{sT2}")
        I(f"v_and_b32 v{ta}, 3, v{wg_}"); I(f"v_lshlrev_b32 v{ta}, {HS.bit_length()-1}, v{ta}"); I(f"v_add_u32 v{ta}, s{sT}, v{ta}")
        I(f"s_cmp_lg_u32 s{sW}, 3"); I("s_cbranch_scc1 L_notlb"); sn = e.snapshot()
        I("s_waitcnt lgkmcnt(0)")
        if tlb & 1: I(f"global_load_dword v{GO+8}, v{ta}, s[{sK}:{sK+1}] nt")
        if tlb & 2: I(f"global_load_dword v{GO+9}, v{ta}, s[{sV}:{sV+1}] nt")
        e.join("L_notlb", sn)
    if tlb and twhen == 0: touch()
    if pf and not spf:
        I(f"v_lshlrev_b32 v{ta}, 15, v{g}"); I(f"v_lshl_add_u32 v{ta}, v{c_}, 7, v{ta}")
        I(f"s_lshl_b32 s{sT}, s{sG}, 17"); I(f"s_lshl_b32 s{sT2}, s{sS}, 11"); I(f"s_add_u32 s{sT}, s{sT}, s{sT2}")
        I(f"s_cmp_lt_u32 s{sW}, 2"); I("s_cbranch_scc1 L_nopf"); sn = e.snapshot()
        I("s_waitcnt lgkmcnt(0)")
        I(f"s_cmp_eq_u32 s{sW}, 2"); I(f"s_cselect_b32 s{sPC}, s{sE}, s{sF}"); I(f"s_cselect_b32 s{sPC+1}, s{sE+1}, s{sF+1}")
        I(f"s_add_u32 s{sPC}, s{sPC}, s{sT}"); I(f"s_addc_u32 s{sPC+1}, s{sPC+1}, 0")
        I(f"global_load_dword v{TM+9}, v{ta}, s[{sPC}:{sPC+1}]")
        e.join("L_nopf", sn)
    I(f"v_and_b32 v{td}, 63, v0"); I(f"v_lshlrev_b32 v{vL8}, 3, v{td}"); I(f"v_lshlrev_b32 v{vL16}, 4, v{td}"); I(f"v_lshlrev_b32 v{vL4}, 2, v{td}")
    I(f"v_mov_b32 v{vZ}, 0")
    e.raw("; LDS hand-off areas start empty (-1) / flags start at 0")
    for k in range(4): I(f"v_mov_b32 v{GA+k}, -1")
    I(f"s_lshl_b32 s{sT}, s{sW}, 10"); I(f"v_add_u32 v{ta}, s{sT}, v{vL16}")
    I(f"ds_write_b128 v{ta}, {vr(GA)} offset:{SC}"); I(f"ds_write_b64 v{vL8}, {vr(GA, 2)} offset:{PB}")
    I(f"v_and_b32 v{ta}, 124, v{vL4}"); I(f"ds_write_b32 v{ta}, v{vZ} offset:{FL}")
    I("s_waitcnt lgkmcnt(0)")
    if spf:
        I(f"s_lshl_b32 s{sT}, s{sG}, 2"); I(f"s_add_u32 s{sT}, s{sT}, s{sW}"); I(f"s_lshl_b32 s{sT}, s{sT}, 15"); I(f"s_lshl_b32 s{sT2}, s{sS}, 11"); I(f"s_add_u32 s{sT}, s{sT}, s{sT2}")
        I(f"s_add_u32 s{sPC}, s{sE}, s{sT}"); I(f"s_addc_u32 s{sPC+1}, s{sE+1}, 0")
        I(f"s_add_u32 s70, s{sF}, s{sT}"); I(f"s_addc_u32 s71, s{sF+1}, 0")
        for base in (sPC, 70):
            for k in range(0, 2048, spf): I(f"s_load_dword s69, s[{base}:{base+1}], {k}")
    I("s_barrier")
    if ts: I(f"v_mov_b32 v{vTS}, s{sTs}"); I(f"v_mov_b32 v{vTS+2}, s{sTs}")
    def hstamp(idx):
        if ts in (1, 2): stamp(idx)
    def lsbmask(dst, regs):
        for k, r in enumerate(regs): I(f"v_alignbit_b32 v{dst}, v{r}, v{dst if k else vZ}, 1")
    def allnew(new, old, n, lbl):
        I(f"v_xor_b32 v{new}, v{new}, v{old}")
        I(f"v_cmp_ne_u32 vcc, {hex((0xffffffff << (32-n)) & 0xffffffff) if n < 32 else -1}, v{new}"); I("s_nop 4")
        if not dbg & 16: I(f"s_cbranch_vccnz {lbl}")
    I(f"s_add_u32 s{rW}, s{sWS}, {hex(wsoff << 20)}"); I(f"s_addc_u32 s{rW+1}, s{sWS+1}, 0"); I(f"s_mov_b32 s{rW+2}, 0x800000"); I(f"s_mov_b32 s{rW+3}, 0x20000")
    I(f"s_lshl_b32 s{sGa}, s{sG}, 14")
    if SCO: I(f"s_add_u32 s{sGa}, s{sGa}, {SCO}")
    I(f"s_lshl_b32 s{sOS}, s{sS}, {7 if lay else 9}")
    if sb: I(f"s_lshl_b32 s{sSl}, s{sS}, 8"); I(f"s_add_u32 s{sSl}, s{sGa}, s{sSl}")
    else: I(f"s_add_u32 s{sSl}, s{sGa}, s{sOS}")
    vSt = 110
    if lay: I(f"v_lshlrev_b32 v{vSt}, 3, v{c_}"); I(f"v_lshl_add_u32 v{vSt}, v{g}, 11, v{vSt}")
    else: I(f"v_mov_b32 v{vSt}, v{vL8}")
    I(f"s_lshl_b32 s{sMB}, s{sG}, 10"); I(f"s_add_u32 s{sMB}, s{sMB}, {MBOX}")
    I(f"s_lshl_b32 s{sT2}, s{sG}, 3"); I(f"s_add_u32 s{sD}, s{sD}, s{sT2}"); I(f"s_addc_u32 s{sD+1}, s{sD+1}, 0")
    if sb:
        I(f"v_lshrrev_b32 v{ta}, 3, v{td}"); I(f"v_and_b32 v{tb}, 7, v{td}"); I(f"v_lshlrev_b32 v{vG}, 8, v{ta}"); I(f"v_lshl_add_u32 v{vG}, v{tb}, 4, v{vG}")
        I(f"v_and_b32 v{ta}, 1, v{ta}"); I(f"v_lshlrev_b32 v{vPm}, 5, v{tb}"); I(f"v_lshl_add_u32 v{vPm}, v{ta}, 4, v{vPm}"); I(f"v_lshl_add_u32 v{vPm}, v{g}, 2, v{vPm}")
        I(f"s_mov_b32 s{sM1}, 0xff00ff00"); I(f"s_mov_b32 s{sM1+1}, 0xff00ff00")
    elif lay:
        I(f"v_lshrrev_b32 v{ta}, 3, v{c_}"); I(f"v_and_b32 v{tb}, 7, v{c_}"); I(f"v_lshlrev_b32 v{vG}, 11, v{ta}")
        I(f"v_lshl_add_u32 v{vG}, v{tb}, 4, v{vG}"); I(f"v_lshl_add_u32 v{vG}, v{g}, 7, v{vG}")
        I(f"v_lshlrev_b32 v{vCh}, 7, v{c_}"); I(f"v_add_u32 v{vCh}, {2048+124}, v{vCh}")
    else:
        I(f"v_lshl_add_u32 v{vG}, v{g}, 9, v{vQ}")
        I(f"v_lshlrev_b32 v{vCh}, 9, v{c_}"); I(f"v_add_u32 v{vCh}, 252, v{vCh}")
    if frot:
        assert not sb
        if frot == 1: I(f"v_subrev_u32 v{vPm}, s{sG}, v{c_}"); I(f"v_and_b32 v{vPm}, 15, v{vPm}")
        else: I(f"v_mov_b32 v{vPm}, v{c_}")
        I(f"v_lshl_add_u32 v{vPm}, v{g}, 4, v{vPm}"); I(f"v_lshlrev_b32 v{vPm}, 2, v{vPm}")
    elif not sb: I(f"v_lshl_add_u32 v{vPm}, v{g}, 2, v{vQ}")
    if dbg & 64: I(f"s_add_u32 s{rW}, s{rW}, 0x1000000"); I(f"s_addc_u32 s{rW+1}, s{rW+1}, 0")
    I(f"s_mov_b32 s{sHg}, 2")
    I(f"s_cmp_lg_u32 s{sW}, 1"); I("s_cbranch_scc1 L_lead"); sn = e.snapshot()
    if not dbg & 1:
        I(f"s_sub_u32 s{sT}, s{sS}, s{sG}"); I(f"s_and_b32 s{sT2}, s{sT}, 3"); I("s_cbranch_scc1 L_lead1"); sn1 = e.snapshot()
        I(f"s_bfe_u32 s{sT}, s{sT}, 0x20002")
        I(f"s_lshr_b32 s{sHg}, s{sT}, 1"); I(f"s_lshl_b32 s{sT2}, s{sHg}, 13"); I(f"s_add_u32 s{sGa}, s{sGa}, s{sT2}")
        I(f"s_and_b32 s{sT2}, s{sT}, 1"); I(f"s_lshl_b32 s{sT2}, s{sT2}, {7 if sb else (12 if lay else 8)}"); I(f"s_add_u32 s{sGa}, s{sGa}, s{sT2}"); I(f"s_add_u32 s{sGa2}, s{sGa}, {0x400 if lay else 0x1000}")
        I(f"s_lshl_b32 s{sMW}, s{sT}, 8"); I(f"s_add_u32 s{sMW}, s{sMW}, s{sMB}")
        if not sb: I(f"buffer_load_dword v{MKc}, v{vCh}, {sr(rW)}, s{sGa} offen {ldflags}")
        I(f"buffer_load_dword v{NOm}, v{vPm}, {sr(rW)}, s{sMW} offen {ldflags}")
        for k in range(2 if sb else 0): I(f"buffer_load_dwordx4 {vr(GA+4*k)}, v{vG}, {sr(rW)}, s{sGa} offen offset:{k*2048} {ldflags}")
        for k in range(0 if sb else 4): I(f"buffer_load_dwordx4 {vr(GA+4*k)}, v{vG}, {sr(rW)}, s{sGa if k < 2 else sGa2} offen offset:{(k%2)*(512 if lay else 2048)} {ldflags}")
        I(f"s_lshl_b32 s{sT}, s{sT}, 2"); I(f"v_mov_b32 v{tb}, s{sT}"); I(f"v_mov_b32 v{ta}, 1")
        I("s_waitcnt vmcnt(0)")
        if sb: lsbmask(MKg, range(GA, GA+8))
        else: lsbmask(MKg, range(GA, GA+16)); lsbmask(MKc, [MKc])
        I(f"v_not_b32 v{NOm}, v{NOm}")
        I(f"s_cmp_lg_u32 s{sHg}, 0"); I("s_cbranch_scc1 L_lead1"); sn1 += e.snapshot()
        if not dbg & 128: I("s_mov_b64 exec, 1"); I(f"global_store_dword v{tb}, v{ta}, s[{sD}:{sD+1}] {stflags}"); I("s_mov_b64 exec, -1")
        e.join("L_lead1", sn1)
    I(f"v_mov_b32 v{ta}, 1"); I(f"ds_write_b32 v{vZ}, v{ta} offset:{FL+32}")
    e.join("L_lead", sn)
    if codepf:
        I(f"s_getpc_b64 s[{sPC}:{sPC+1}]")
        e.label("L_pc")
        I(f"s_sub_u32 s{sPC}, s{sPC}, L_pc-{KN}"); I(f"s_subb_u32 s{sPC+1}, s{sPC+1}, 0")
        if codepf == 2:
            I(f"s_lshr_b32 s{sT}, s2, 3"); I(f"s_lshl_b32 s{sT}, s{sT}, 11"); I(f"v_lshlrev_b32 v{ta}, 7, v{c_}"); I(f"v_add_u32 v{ta}, s{sT}, v{ta}")
            I(f"s_cmp_lg_u32 s{sW}, 3"); I("s_cbranch_scc1 L_ncp"); sn = e.snapshot()
            I(f"global_load_dword v{TM+8}, v{ta}, s[{sPC}:{sPC+1}]")
            e.join("L_ncp", sn)
        else:
            I(f"v_and_b32 v{ta}, 0xff, v0"); I(f"v_lshlrev_b32 v{ta}, 7, v{ta}")
            I(f"global_load_dword v{TM+8}, v{ta}, s[{sPC}:{sPC+1}] offset:1024")
    slice_off(sT2, sT, 8)
    I(f"s_add_u32 s{rF}, s{sF}, s{sT2}"); I(f"s_addc_u32 s{rF+1}, s{sF+1}, 0")
    I(f"s_sub_u32 s{rF+2}, 0x200000, s{sT2}"); I(f"s_mov_b32 s{rF+3}, 0x20000")
    I(f"s_lshl_b32 s{sOP}, s{sG}, 15"); I(f"s_add_u32 s{sOP}, s{sOP}, {OPART}")
    I(f"s_lshl_b32 s{sT}, s{sW}, 13"); I(f"s_add_u32 s{sOS}, s{sOS}, s{sT}"); I(f"s_add_u32 s{sOS}, s{sOS}, s{sOP}")
    I(f"s_lshr_b32 s{sT}, s{sS}, 2"); I(f"s_lshl_b32 s{sFo}, s{sT}, 13"); I(f"s_add_u32 s{sFo}, s{sFo}, s{sOP}")
    I(f"s_and_b32 s{sT2}, s{sS}, 3"); I(f"s_lshl_b32 s{sOP2}, s{sT2}, {11 if lay else 7}"); I(f"s_add_u32 s{sFo}, s{sFo}, s{sOP2}"); I(f"s_add_u32 s{sFo2}, s{sFo}, {0x400 if lay else 0x1000}")
    I(f"v_lshrrev_b32 v{ta}, 3, v{td}"); I(f"v_and_b32 v{tb}, 7, v{td}"); I(f"v_lshlrev_b32 v{vFo}, {7 if lay else 9}, v{ta}"); I(f"v_lshl_add_u32 v{vFo}, v{tb}, 4, v{vFo}")
    sscat(sT, sPoll, sS, HP, 0, first=2); sscat(sOP2, sPoll, sG, GP, 0); I(f"s_add_u32 s{sT}, s{sT}, s{sOP2}")
    I(f"s_lshl_b32 s{sT}, s{sT}, 8"); I(f"s_lshl_b32 s{sT2}, s{sT2}, 6"); I(f"s_add_u32 s{sT}, s{sT}, s{sT2}")
    I(f"v_lshlrev_b32 v{vOut}, 3, v{tb}"); I(f"v_lshl_add_u32 v{vOut}, v{g}, 1, v{vOut}"); I(f"v_add_u32 v{vOut}, s{sT}, v{vOut}")
    I(f"v_lshrrev_b32 v{ta}, 3, v{c_}"); I(f"v_lshl_add_u32 v{vPw}, v{ta}, 2, v{g}"); I(f"v_lshlrev_b32 v{vPw}, 5, v{vPw}")
    sscat(sT, sT2, sW, TP[1:], 8); I(f"v_lshlrev_b32 v{vF}, {15 if frot else 19}, v{g}"); I(f"v_add3_u32 v{vF}, v{vF}, v{vQ}, s{sT}")
    I(f"v_lshrrev_b32 v{ta}, 2, v{c_}"); I(f"v_mul_u32_u24 v{vWw}, {WSZ}, v{ta}")
    I(f"v_lshrrev_b32 v{ta}, 1, v{g}"); I(f"v_mul_u32_u24 v{ta}, {HSZ}, v{ta}"); I(f"s_lshl_b32 s{sT}, s{sW}, 7"); I(f"v_add3_u32 v{vWw}, v{vWw}, v{ta}, s{sT}")
    I(f"v_and_b32 v{ta}, 3, v{c_}"); I(f"v_lshl_add_u32 v{vWw}, v{ta}, 4, v{vWw}"); I(f"v_and_b32 v{ta}, 1, v{g}"); I(f"v_lshl_add_u32 v{vWw}, v{ta}, 3, v{vWw}")
    I(f"s_lshl_b32 s{sT}, s{sW}, 11"); I(f"s_add_u32 s{sT}, s{sT}, {OB}"); I(f"v_add_u32 v{vT}, s{sT}, v{vL8}")
    if ctl:
        if fa:
            I(f"s_lshl_b32 s{sPg}, s{sG}, {4 - fa + fls}"); I(f"s_add_u32 s{sPg}, s{sPg}, {PRG}")
            I(f"v_lshrrev_b32 v{vPs}, {fa}, v{c_}"); I(f"v_lshlrev_b32 v{vPs}, {fls}, v{vPs}")
            I(f"v_and_b32 v{ta}, {(1 << fa) - 1}, v{c_}"); I(f"v_lshl_add_u32 v{vPs}, v{ta}, {7 - fa}, v{vPs}")
            I(f"v_lshl_add_u32 v{vPs}, v{g}, {8 if fls >= 10 else 8 - fa + fls}, v{vPs}")
            assert (4 << (8 - fa + fls) if fls < 10 else 1 << (8 - fa + fls)) <= 0x18000
        else:
            I(f"s_lshl_b32 s{sPg}, s{sG}, {6 + psh}"); I(f"s_add_u32 s{sPg}, s{sPg}, {PRG}")
            I(f"v_lshrrev_b32 v{vPs}, 2, v{vL4}"); I(f"v_min_u32 v{vPs}, 63, v{vPs}"); I(f"v_lshlrev_b32 v{vPs}, {psh}, v{vPs}")
    selectors(I, SELH, ta, tb, tc, td)
    cs = struct.unpack('<I', struct.pack('<f', (128 ** -0.5) * math.log2(math.e)))[0]
    I(f"s_mov_b32 s{sCS}, {hex(cs)}")
    if sb: I(f"s_mov_b32 s{sM0}, 0xffff"); I(f"s_mov_b32 s{sM0+1}, 0x207")
    def ctl_issue(mi):
        I(f"s_mov_b32 exec_lo, {hex((0xffff << (16*mi)) & 0xffffffff) if mi < 2 else 0}"); I(f"s_mov_b32 exec_hi, {hex((0xffff << (16*(mi-2))) & 0xffffffff) if mi >= 2 else 0}")
        I(f"buffer_load_dword v{CT}, v{vPs}, {sr(rW)}, s{sPg} offen {ldflags}")
        I("s_mov_b64 exec, -1")
        I(f"ds_read_b32 v{CT+1}, v{vZ} offset:{FL+36}")
    def ctl_count(mi):
        I(f"v_xor_b32 v{CT}, v{CT}, v{POl}"); I(f"v_and_b32 v{CT}, 1, v{CT}"); I(f"v_cmp_eq_u32 s[{sVm}:{sVm+1}], 1, v{CT}")
        I(f"v_readfirstlane_b32 s{sPr}, v{CT+1}")
        I(f"s_bfe_u32 s{sCn}, s{sVm + mi//2}, {hex((16 << 16) + 16*(mi % 2))}"); I(f"s_bcnt1_i32_b32 s{sCn}, s{sCn}")
    def ctl_write(cond_lbl):
        I(f"v_mov_b32 v{CT+1}, s{sMd}"); I(f"ds_write_b32 v{vZ}, v{CT+1} offset:{FL+40}")
    def ctl_before(mi, m, lbl):
        I(f"s_cmp_lt_u32 s{sCn}, {cb}"); I(f"s_cbranch_scc1 {lbl}"); sn = e.snapshot()
        I(f"s_mov_b32 s{sMd}, {hex(((2*m + 1) << 8) | 2)}"); ctl_write(lbl)
        e.join(lbl, sn)
    def ctl_pass(mi, m, lbl):
        I(f"v_not_b32 v{CT}, v{POl}")
        I(f"s_add_u32 s{sT}, s{sS}, {16*mi}"); I(f"s_lshl_b64 exec, 1, s{sT}")
        I(f"buffer_store_dword v{CT}, v{vPs}, {sr(rW)}, s{sPg} offen {stflags}")
        I("s_mov_b64 exec, -1")
        I(f"s_cmp_lt_u32 s{sCn}, {cl}"); I(f"s_cbranch_scc1 {lbl}"); sn = e.snapshot()
        I(f"s_mov_b32 s{sMd}, {hex(((2*m + blen) << 8) | 2)}"); ctl_write(lbl)
        e.join(lbl, sn)
    def ctl_after(mi, m, lbl, ex):
        I(f"s_cmp_ge_u32 s{sCn}, {ct}"); I(f"s_cbranch_scc1 {lbl}"); sn = e.snapshot()
        I(f"s_max_u32 s{sPr}, s{sPr}, {2*m}")
        I(f"s_sub_u32 s{sT}, s{sPr}, {2*m - 1}"); I(f"s_mul_i32 s{sT}, s{sT}, {ex}"); I(f"s_add_u32 s{sT}, s{sT}, s{sPr}")
        I(f"s_lshl_b32 s{sMd}, s{sT}, 8"); I(f"s_or_b32 s{sMd}, s{sMd}, 1"); ctl_write(lbl)
        e.join(lbl, sn)
    def ldswait(lbl, vaddr, off, val, slp_):
        e.label(lbl)
        I(f"s_sleep {slp_}")
        I(f"ds_read_b32 v{TM}, v{vaddr} offset:{off}"); I("s_waitcnt lgkmcnt(0)")
        I(f"v_readfirstlane_b32 s{sPoll}, v{TM}")
        I(f"s_cmp_eq_u32 s{sPoll}, {val}"); I(f"s_cbranch_scc1 {lbl}")
    def entry_loads():
        I(f"buffer_load_dwordx2 {vr(NOo, 2)}, v{vSt}, {sr(rW)}, s{sOS} offen {ldflags}")
        I(f"s_cmp_lg_u32 s{sW}, 0"); I("s_cbranch_scc1 L_el"); sn = e.snapshot()
        if ctl: I(f"buffer_load_dword v{POl}, v{vPs}, {sr(rW)}, s{sPg} offen {ldflags}")
        I(f"s_add_u32 s{sT}, s{sSl}, 0x2000")
        if sb: I(f"buffer_load_dword v{NOs}, v{vL4}, {sr(rW)}, s{sSl} offen {ldflags}"); I(f"buffer_load_dword v{NOs+2}, v{vL4}, {sr(rW)}, s{sT} offen {ldflags}")
        else: I(f"buffer_load_dwordx2 {vr(NOs, 2)}, v{vSt}, {sr(rW)}, s{sSl} offen {ldflags}"); I(f"buffer_load_dwordx2 {vr(NOs+2, 2)}, v{vSt}, {sr(rW)}, s{sT} offen {ldflags}")
        for k in range(2): I(f"buffer_load_dwordx2 {vr(MOm+2*k, 2)}, v{vL8}, {sr(rW)}, s{sMB} offen offset:{k*512} {ldflags}")
        for k in range(2): I(f"buffer_load_dwordx4 {vr(GO+4*k)}, v{vFo}, {sr(rW)}, s{sFo2 if k else sFo} offen {ldflags}")
        if otouch & 2: I(f"global_load_ushort v{GO+8}, v{vOut}, s[{sO}:{sO+1}]")
        e.join("L_el", sn)
    def entry_list():
        r = [f"buffer_load_dword v{POl}, v{vPs}, {sr(rW)}, s{sPg} offen {ldflags}",
             f"buffer_load_dwordx2 {vr(NOs, 2)}, v{vSt}, {sr(rW)}, s{sSl} offen {ldflags}",
             f"buffer_load_dwordx2 {vr(NOs+2, 2)}, v{vSt}, {sr(rW)}, s{sOP2} offen {ldflags}"]
        r += [f"buffer_load_dwordx2 {vr(MOm+2*k, 2)}, v{vL8}, {sr(rW)}, s{sMB} offen offset:{k*512} {ldflags}" for k in range(2)]
        r += [f"buffer_load_dwordx4 {vr(GO+4*k)}, v{vFo}, {sr(rW)}, s{sFo2 if k else sFo} offen {ldflags}" for k in range(2)]
        return r
    if tlb and twhen == 1: touch()
    if oearly == 1 and not dbg & 1: entry_loads()
    if elds:
        slice_off(sT2, sT, 8)
        I(f"s_add_u32 s{rK}, s{sE}, s{sT2}"); I(f"s_addc_u32 s{rK+1}, s{sE+1}, 0")
        I(f"s_sub_u32 s{rK+2}, 0x200000, s{sT2}"); I(f"s_mov_b32 s{rK+3}, 0x20000")
        if erow:
            I(f"v_lshlrev_b32 v{td}, 8, v{g}")
            I(f"s_lshl_b32 s{sOff}, s{sG}, {2 if erot else 6}"); I(f"s_add_u32 s{sOff}, s{sOff}, s{sW}")
            e.vmq = []; e.vm_done = 0
            did = []
            for k in range(0 if dbg & 8 else 32):
                if k >= edepth: e.wait_vm(did[k - edepth])
                if k % 2 == 0:
                    if k: I(f"s_add_u32 s{sOff}, s{sOff}, 4")
                    I(f"s_and_b32 s{sOff}, s{sOff}, 63"); I(f"s_and_b32 s{sT2}, s{sOff}, 15")
                    I(f"v_xor_b32 v{tb}, s{sT2}, v{c_}"); I(f"v_lshl_add_u32 v{tb}, v{tb}, 4, v{td}")
                    I(f"s_lshl_b32 s{sOffX}, s{sOff}, 15"); I(f"s_lshl_b32 s{sT}, s{sOff}, 11"); I(f"s_add_u32 m0, s{sT}, {EB}")
                did.append(I(f"buffer_load_dwordx4 v{tb}, {sr(rK)}, s{sOffX} offen offset:{(k%2)*1024} {efflags} lds"))
        else:
            I(f"v_and_b32 v{ta}, 15, v{wg_}"); I(f"v_xor_b32 v{tb}, v{ta}, v{c_}"); I(f"v_lshlrev_b32 v{tb}, 4, v{tb}"); I(f"v_lshl_add_u32 v{tb}, v{ta}, 15, v{tb}")
            I(f"s_and_b32 s{sOff}, s{sG}, {7 if erot else 0}"); I(f"s_lshl_b32 s{sT2}, s{sW}, 10"); I(f"s_add_u32 s{sT2}, s{sT2}, {EB}")
            e.vmq = []; e.vm_done = 0
            did = []
            if eord:
                I(f"s_lshl_b32 s{sOff}, s{sG}, 1")
                for k in range(0 if dbg & 8 else 32):
                    if k >= edepth: e.wait_vm(did[k - edepth])
                    if k: I(f"s_add_u32 s{sOff}, s{sOff}, 1")
                    bp, mp = ((0, 3), (2, 0))[eord - 1]
                    sscat(sOffX, sT, sOff, TP, 8, first=bp)
                    I(f"s_bfe_u32 s{sPoll}, s{sOff}, {hex((2 << 16) + mp)}"); I(f"s_lshl_b32 s{sT}, s{sPoll}, 19"); I(f"s_or_b32 s{sOffX}, s{sOffX}, s{sT}")
                    I(f"s_bfe_u32 s{sT}, s{sOff}, {hex((3 << 16) + bp)}"); I(f"s_lshl_b32 s{sT}, s{sT}, 2"); I(f"s_or_b32 s{sT}, s{sT}, s{sPoll}")
                    I(f"s_lshl_b32 s{sT}, s{sT}, 12"); I(f"s_add_u32 m0, s{sT}, s{sT2}")
                    did.append(I(f"buffer_load_dwordx4 v{tb}, {sr(rK)}, s{sOffX} offen {efflags} lds"))
            else:
                for k in range(0 if dbg & 8 else 32):
                    bb, m = k // 4, k % 4
                    if k >= edepth: e.wait_vm(did[k - edepth])
                    if m == 0:
                        if bb: I(f"s_add_u32 s{sOff}, s{sOff}, 1"); I(f"s_and_b32 s{sOff}, s{sOff}, 7")
                        sscat(sOffX, sT, sOff, TP, 8); I(f"s_lshl_b32 s{sT}, s{sOff}, 14"); I(f"s_add_u32 s{sT}, s{sT}, s{sT2}")
                    else: I(f"s_add_u32 s{sOffX}, s{sOffX}, 0x80000"); I(f"s_add_u32 s{sT}, s{sT}, 0x1000")
                    I(f"s_mov_b32 m0, s{sT}")
                    did.append(I(f"buffer_load_dwordx4 v{tb}, {sr(rK)}, s{sOffX} offen {efflags} lds"))
        I(f"s_lshl_b32 s{sT}, s{sW}, 2"); I(f"v_mov_b32 v{ta}, s{sT}"); I(f"v_mov_b32 v{tc}, 1")
        I("s_waitcnt vmcnt(0)")
        I(f"ds_write_b32 v{ta}, v{tc} offset:{FL + 64}")
    elif pace:
        I(f"s_lshl_b32 s{sT}, s{sW}, 9"); I(f"v_mov_b32 v{tb}, s{sT}")
        ldswait("L_pace", tb, SC, -1, 16)
    if tlb and twhen == 2: touch()
    if fpf:
        I(f"s_lshl_b32 s{sT}, s{sG}, 2"); I(f"s_add_u32 s{sT}, s{sT}, s{sW}"); I(f"s_lshl_b32 s{sT}, s{sT}, 15"); I(f"v_lshlrev_b32 v{ta}, 7, v{c_}")
        I(f"buffer_load_dword v{tb}, v{ta}, {sr(rF)}, s{sT} offen"); I("s_waitcnt vmcnt(0)")
        if fpf > 1: I(f"s_sleep {fpf}")
    if oearly == 2 and not dbg & 1: entry_loads()
    e.vmq = []; e.vm_done = 0
    fid = []
    if fd0 > fdepth or oearly == 3: I(f"s_cmp_eq_u32 s{sW}, 0"); I("s_cselect_b64 vcc, -1, 0")
    for k in range(0 if dbg & 2 else 32):
        rr, u = k // 2, k % 2
        if oearly == 3 and not dbg & 1:
            if k == 0: el = entry_list(); I(f"s_add_u32 s{sOP2}, s{sSl}, 0x2000")
            if k == 29: I(f"buffer_load_dwordx2 {vr(NOo, 2)}, v{vSt}, {sr(rW)}, s{sOS} offen {ldflags}", counted=False)
            if k % 4 == 1 and el:
                I(f"s_cbranch_vccz L_el{k}"); sn = e.snapshot(); I(el.pop(0), counted=False); e.join(f"L_el{k}", sn)
        if fd0 > fdepth:
            if k >= fd0: e.wait_vm(fid[k - fd0])
            if k >= fdepth:
                I(f"s_cbranch_vccnz L_f{k}"); sn = e.snapshot(); I(f"s_waitcnt vmcnt({fdepth-1})"); e.join(f"L_f{k}", sn)
        elif k >= fdepth: e.wait_vm(fid[k - fdepth])
        if u == 0 and frot:
            I(f"s_add_u32 s{sOffX}, s{sG}, {rr if frot == 1 else 0}") if frot == 1 else I(f"s_mov_b32 s{sOffX}, {rr}")
            I(f"s_and_b32 s{sOffX}, s{sOffX}, 15"); I(f"s_lshl_b32 s{sOffX}, s{sOffX}, 17")
        elif u == 0: I(f"s_mov_b32 s{sOffX}, {hex(rr*32768)}")
        fid.append(I(f"buffer_load_dwordx4 {ar(4*(16*u+rr))}, v{vF}, {sr(rF)}, s{sOffX} offen offset:{u*(256 << TP[0])} {efflags}"))
    if not dbg & 1:
        if oearly == 0: entry_loads()
        I(f"s_cmp_lg_u32 s{sW}, 0"); I("s_cbranch_scc1 L_init")
        sn0 = e.snapshot()
        e.label("L_ispin")
        I("s_mov_b64 exec, 1"); I(f"global_load_dwordx2 {vr(TM, 2)}, v{vZ}, s[{sD}:{sD+1}] {ldflags}"); I("s_mov_b64 exec, -1")
        I("s_waitcnt vmcnt(0)")
        I(f"v_and_b32 v{TM}, v{TM}, v{TM+1}")
        I(f"v_readfirstlane_b32 s{sPoll}, v{TM}")
        I(f"s_cmp_lg_u32 s{sPoll}, {'0x7654321' if dbg & 128 else 0}"); I("s_cbranch_scc1 L_init0")
        sn = e.snapshot()
        I("s_sleep 32"); I("s_branch L_ispin")
        e.hists = [[]]
        e.join("L_init0", sn)
        for k in range(0, 4, 2 if sb else 1): I(f"v_not_b32 v{NOs+k}, v{NOs+k}")
        lsbmask(MKo, range(GO, GO+8))
        if npoll > 1: I(f"ds_write_b32 v{vL4}, v{MKo} offset:{MK}")
        ldswait("L_h1", vZ, FL+32, 0, 1)
        e.join("L_init", sn0)
    I("s_waitcnt vmcnt(0) lgkmcnt(0)")
    if dbg & 64: I(f"s_mov_b32 s{rW}, s{sWS}"); I(f"s_mov_b32 s{rW+1}, s{sWS+1}")
    I(f"v_not_b32 v{NOo}, v{NOo}"); I(f"v_not_b32 v{NOo+1}, v{NOo+1}")
    hstamp(0)
    for half in range(2):
        if skew & 8:
            I(f"s_add_u32 s{sT}, s2, s{sW}"); I(f"s_and_b32 s{sT}, s{sT}, 3"); I(f"s_cbranch_scc1 L_nosk{half}"); sn = e.snapshot()
            for _ in range(10): I("s_sleep 127")
            e.join(f"L_nosk{half}", sn)
        if bar: I("s_barrier")
        if dbg & 1: I(f"s_branch L_w{half}")
        I(f"s_cmp_lg_u32 s{sW}, 0"); I(f"s_cbranch_scc1 L_oth{half}")
        sn_other = e.snapshot()
        if half: I(f"s_add_u32 s{sSl}, s{sSl}, 0x2000")
        mE = (mA, mB)[half]; ea = (early >> half) & 1
        if ea:
            e.label(f"L_sidle{half}")
            I("s_sleep 16"); I(f"ds_read_b32 v{TM}, v{vZ} offset:{FL+36}"); I("s_waitcnt lgkmcnt(0)"); I(f"v_readfirstlane_b32 s{sPr}, v{TM}")
            I(f"s_cmp_lt_u32 s{sPr}, {2*mE - ew}"); I(f"s_cbranch_scc1 L_sidle{half}")
        e.label(f"L_sspin{half}")
        I(f"s_sleep {esl if ea else 4}")
        if ea:
            ctl_issue(half); I("s_waitcnt vmcnt(0) lgkmcnt(0)"); ctl_count(half); ctl_before(half, mE, f"L_cb{half}")
        for k in range(4): I(f"ds_read_b64 {vr(TM+2*k, 2)}, v{vL8} offset:{SC + half*2048 + k*512}")
        I("s_waitcnt lgkmcnt(0)")
        I(f"v_max3_u32 v{GA}, v{TM}, v{TM+1}, v{TM+2}"); I(f"v_max3_u32 v{GA+1}, v{TM+3}, v{TM+4}, v{TM+5}")
        I(f"v_max3_u32 v{GA}, v{GA}, v{TM+6}, v{TM+7}"); I(f"v_max_u32 v{GA}, v{GA}, v{GA+1}")
        I(f"v_cmp_eq_u32 vcc, -1, v{GA}"); I("s_nop 4"); I(f"s_cbranch_vccnz L_sspin{half}")
        hstamp(1 + 8*half)
        for k in range(1, 4):
            I(f"v_add_f32 v{TM}, v{TM}, v{TM+2*k}"); I(f"v_add_f32 v{TM+1}, v{TM+1}, v{TM+2*k+1}")
        if sb:
            I(f"v_bfe_u32 v{TM+2}, v{TM}, 17, 1"); I(f"v_add3_u32 v{TM+2}, v{TM}, v{TM+2}, s{sM0}"); I(f"v_and_b32 v{TM+2}, 0xfffe0000, v{TM+2}")
            I(f"v_cmp_class_f32 vcc, v{TM}, s{sM0+1}"); I(f"v_cndmask_b32 v{TM}, v{TM+2}, v{TM}, vcc")
            I(f"v_cvt_pk_bf16_f32 v{TM}, v{TM}, v{TM+1}"); I(f"v_bfi_b32 v{TM}, 1, v{NOs+2*half}, v{TM}")
            if not dbg & 32: I(f"buffer_store_dword v{TM}, v{vL4}, {sr(rW)}, s{sSl} offen {stflags}")
        else:
            for k in range(2): I(f"v_bfi_b32 v{TM+k}, 1, v{NOs+2*half+k}, v{TM+k}")
            if not dbg & 32: I(f"buffer_store_dwordx2 {vr(TM, 2)}, v{vSt}, {sr(rW)}, s{sSl} offen {stflags}")
        hstamp(2 + 8*half)
        if ea:
            ctl_pass(half, mE, f"L_cp{half}")
            ctl_after(half, mE, f"L_ca0{half}", exte)
        if slp0: I(f"s_sleep {slp0}")
        e.label(f"L_spin{half}")
        if ea:
            I(f"s_cmp_ge_u32 s{sCn}, {ct}"); I(f"s_cbranch_scc1 L_slow{half}"); sn = e.snapshot()
            I(f"s_sleep {cslp}")
            ctl_issue(half); I("s_waitcnt vmcnt(0) lgkmcnt(0)"); ctl_count(half); ctl_after(half, mE, f"L_ca{half}", exte)
            I(f"s_branch L_mb{half}"); sn2 = e.snapshot(); e.hists = [[]]
            e.join(f"L_slow{half}", sn)
        I(f"s_sleep {slp}")
        if ea: e.join(f"L_mb{half}", sn2)
        I(f"buffer_load_dwordx2 {vr(GA, 2)}, v{vL8}, {sr(rW)}, s{sMB} offen offset:{half*512} {ldflags}")
        I("s_waitcnt vmcnt(0)")
        I(f"v_xor_b32 v{TM}, v{GA}, v{MOm+2*half}"); I(f"v_xor_b32 v{TM+1}, v{GA+1}, v{MOm+2*half+1}")
        I(f"v_and_b32 v{TM}, v{TM}, v{TM+1}"); I(f"v_and_b32 v{TM}, 1, v{TM}")
        I(f"v_cmp_eq_u32 vcc, 0, v{TM}"); I(f"v_and_b32 v{GA}, -2, v{GA}"); I(f"v_and_b32 v{GA+1}, -2, v{GA+1}"); I("s_nop 2")
        if not dbg & 16: I(f"s_cbranch_vccnz L_spin{half}")
        I(f"v_cvt_pk_bf16_f32 v{GA}, v{GA}, v{GA+1}"); I(f"v_min_u32 v{GA}, -2, v{GA}")
        I(f"ds_write_b32 v{vL4}, v{GA} offset:{PB + half*256}")
        I(f"s_branch L_lrd{half}")
        sn_h0 = e.snapshot()
        e.hists = [[]]
        e.join(f"L_oth{half}", sn_other)
        e.raw("; ---- gatherer: sum of the 16 partials of its head, softmax (true max), weights into the group's mailbox")
        I(f"s_cmp_lg_u32 s{sHg}, {half}"); I(f"s_cbranch_scc1 L_lspin{half}"); sn = e.snapshot()
        ldswait(f"L_gwait{half}", vZ, SC + half*2048 + 256, -1, 8)
        e.label(f"L_gspin{half}")
        I(f"s_sleep {gslp}")
        if sb:
            for k in range(2): I(f"buffer_load_dwordx4 {vr(GA+4*k)}, v{vG}, {sr(rW)}, s{sGa} offen offset:{k*2048} {ldflags}")
            I("s_waitcnt vmcnt(0)")
            lsbmask(TM, range(GA, GA+8)); allnew(TM, MKg, 8, f"L_gspin{half}")
            Y = GA + 8
            for k in range(8):
                I(f"v_and_b32 v{Y+2*k+1}, 0xffff0000, v{GA+k}"); I(f"v_and_b32 v{GA+k}, -2, v{GA+k}"); I(f"v_lshlrev_b32 v{Y+2*k}, 16, v{GA+k}")
            for m in range(8): I(f"v_add_f32 v{GA+m}, v{Y+m}, v{Y+8+m}")
        else:
            I(f"buffer_load_dword v{TM}, v{vCh}, {sr(rW)}, s{sGa} offen {ldflags}")
            I("s_waitcnt vmcnt(0)")
            lsbmask(TM, [TM]); allnew(TM, MKc, 1, f"L_gspin{half}")
            e.label(f"L_gfull{half}")
            for k in range(4): I(f"buffer_load_dwordx4 {vr(GA+4*k)}, v{vG}, {sr(rW)}, s{sGa if k < 2 else sGa2} offen offset:{(k%2)*(512 if lay else 2048)} {ldflags}")
            I("s_waitcnt vmcnt(0)")
            lsbmask(TM, range(GA, GA+16)); allnew(TM, MKg, 16, f"L_gfull{half}")
            for k in range(16): I(f"v_and_b32 v{GA+k}, -2, v{GA+k}")
            for k in range(1, 4):
                for m in range(4): I(f"v_add_f32 v{GA+m}, v{GA+m}, v{GA+4*k+m}")
        def rowsum(x):
            I(f"v_permlane16_swap_b32 v{x}, v{x+1}"); I(f"v_permlane16_swap_b32 v{x+2}, v{x+3}")
            I(f"v_add_f32 v{x}, v{x}, v{x+1}"); I(f"v_add_f32 v{x+2}, v{x+2}, v{x+3}")
            I(f"v_permlane32_swap_b32 v{x}, v{x+2}"); I(f"v_add_f32 v{x}, v{x}, v{x+2}")
        rowsum(GA)
        if sb:
            rowsum(GA+4)
            for x in (GA, GA+4): I(f"v_add_f32_dpp v{x}, v{x}, v{x} row_ror:8 row_mask:0xf bank_mask:0xf")
            I(f"v_cndmask_b32 v{GA}, v{GA}, v{GA+4}, s[{sM1}:{sM1+1}]")
        m = GA+5; m2 = GA+6
        def allred(op):
            I(f"{op}_dpp v{m}, v{GA}, v{GA} row_ror:8 row_mask:0xf bank_mask:0xf")
            for r in (4, 2, 1): I(f"{op}_dpp v{m}, v{m}, v{m} row_ror:{r} row_mask:0xf bank_mask:0xf")
            for sw in (16, 32): I(f"v_mov_b32 v{m2}, v{m}"); I(f"v_permlane{sw}_swap_b32 v{m}, v{m2}"); I(f"{op} v{m}, v{m}, v{m2}")
        allred("v_max_f32")
        I(f"v_mul_f32 v{m}, s{sCS}, v{m}"); I(f"v_fma_f32 v{GA}, v{GA}, s{sCS}, -v{m}"); I(f"v_exp_f32 v{GA}, v{GA}")
        allred("v_add_f32")
        I(f"v_rcp_f32 v{m}, v{m}"); I(f"v_mul_f32 v{GA}, v{GA}, v{m}")
        I(f"v_bfi_b32 v{GA}, 1, v{NOm}, v{GA}")
        if not dbg & (32 + 512): I(f"buffer_store_dword v{GA}, v{vPm}, {sr(rW)}, s{sMW} offen {stflags}")
        hstamp(3 + 8*half)
        e.join(f"L_lspin{half}", sn)
        I(f"s_sleep {lslp}")
        e.join(f"L_lrd{half}", sn_h0)
        for k in range(2): I(f"ds_read_b128 {vr(PP + 4*k)}, v{vPw} offset:{PB + half*256 + k*16}")
        I("s_waitcnt lgkmcnt(0)")
        I(f"v_max3_u32 v{TM}, v{PP}, v{PP+1}, v{PP+2}"); I(f"v_max3_u32 v{TM+1}, v{PP+3}, v{PP+4}, v{PP+5}")
        I(f"v_max3_u32 v{TM}, v{TM}, v{PP+6}, v{PP+7}"); I(f"v_max_u32 v{TM}, v{TM}, v{TM+1}")
        I(f"v_cmp_eq_u32 vcc, -1, v{TM}"); I("s_nop 4"); I(f"s_cbranch_vccnz L_lspin{half}")
        e.label(f"L_w{half}")
        hstamp(4 + 8*half)
        def pd(rr):
            for mm in range(4): I(f"v_perm_b32 v{PD+4*(rr%2)+mm}, v{PP+rr//2}, v{PP+rr//2}, v{SELH+4*(rr%2)+mm}")
        pd(0)
        for rr in range(16):
            if rr < 15: pd(rr+1)
            for u in range(2):
                c = vr(AW+4*u) if rr else "0"
                I(f"v_mfma_f32_16x16x32_bf16 {vr(AW+4*u)}, {vr(PD+4*(rr%2))}, {ar(4*(16*u+rr))}, {c}")
        for u in range(2):
            x = AW+4*u; H = GA+8*u; Lo = H+2; f = H+4
            I(f"v_cvt_pk_bf16_f32 v{H}, v{x}, v{x+1}"); I(f"v_cvt_pk_bf16_f32 v{H+1}, v{x+2}, v{x+3}")
            I(f"v_lshlrev_b32 v{f}, 16, v{H}"); I(f"v_and_b32 v{f+1}, 0xffff0000, v{H}")
            I(f"v_lshlrev_b32 v{f+2}, 16, v{H+1}"); I(f"v_and_b32 v{f+3}, 0xffff0000, v{H+1}")
            for k in range(4): I(f"v_sub_f32 v{f+k}, v{x+k}, v{f+k}")
            I(f"v_cvt_pk_bf16_f32 v{Lo}, v{f}, v{f+1}"); I(f"v_cvt_pk_bf16_f32 v{Lo+1}, v{f+2}, v{f+3}")
            I(f"ds_write_b64 v{vWw}, {vr(H, 2)} offset:{2*half*HSZ + u*64}"); I(f"ds_write_b64 v{vWw}, {vr(Lo, 2)} offset:{2*half*HSZ + u*64 + PSZ}")
        I("s_waitcnt lgkmcnt(0)")
        hstamp(5 + 8*half)
        if bar: I("s_barrier")
        else:
            I(f"s_lshl_b32 s{sT}, s{sW}, 2"); I(f"v_mov_b32 v{TM}, s{sT}"); I(f"v_mov_b32 v{TM+1}, 1")
            I(f"ds_write_b32 v{TM}, v{TM+1} offset:{FL + 16*half}")
        if tlb and twhen == 3 and half == 0: touch()
        hstamp(6 + 8*half)
    if ctl and not dbg & 1:
        e.raw("; ---- helper 0 steers the streamers' load depth: workgroups ahead of their group ease off, those behind dig deeper")
        I(f"s_cmp_lg_u32 s{sW}, 0"); I("s_cbranch_scc1 L_cend"); snc = e.snapshot()
        for k, m in enumerate(MS):
            mi = 2 + k
            e.label(f"L_cidle{mi}")
            I("s_sleep 16"); I(f"ds_read_b32 v{TM}, v{vZ} offset:{FL+36}"); I("s_waitcnt lgkmcnt(0)"); I(f"v_readfirstlane_b32 s{sPr}, v{TM}")
            I(f"s_cmp_lt_u32 s{sPr}, {2*m - lw}"); I(f"s_cbranch_scc1 L_cidle{mi}")
            e.label(f"L_ctl{mi}")
            I(f"s_sleep {cslp}")
            ctl_issue(mi); I("s_waitcnt vmcnt(0) lgkmcnt(0)"); ctl_count(mi)
            I(f"s_cmp_ge_u32 s{sPr}, {2*m}"); I(f"s_cbranch_scc1 L_cpub{mi}"); sn = e.snapshot()
            ctl_before(mi, m, f"L_cb{mi}")
            I(f"s_branch L_ctl{mi}"); e.hists = [[]]
            e.join(f"L_cpub{mi}", sn)
            ctl_pass(mi, m, f"L_cp{mi}")
            e.label(f"L_cme{mi}")
            ctl_after(mi, m, f"L_ca{mi}", ext)
            I(f"s_cmp_ge_u32 s{sCn}, {ct}"); I(f"s_cbranch_scc1 L_cnx{mi}"); sn = e.snapshot()
            I(f"s_sleep {cslp}")
            ctl_issue(mi); I("s_waitcnt vmcnt(0) lgkmcnt(0)"); ctl_count(mi)
            I(f"s_branch L_cme{mi}"); e.hists = [[]]
            e.join(f"L_cnx{mi}", sn)
        if otouch & 1: I(f"global_load_ushort v{GO+8}, v{vOut}, s[{sO}:{sO+1}]")
        e.join("L_cend", snc)
    if npoll > 1: I(f"ds_read_b32 v{MKo}, v{vL4} offset:{MK}")
    I("s_waitcnt vmcnt(0) lgkmcnt(0)")
    I("s_barrier")
    e.lgq = []; e.lg_done = 0
    ids = [I(f"ds_read_b64 {vr(TM+2*k, 2)}, v{vT} offset:{k*512}") for k in range(4)]
    for k in range(1, 4):
        e.wait_lg(ids[k])
        I(f"v_add_f32 v{TM}, v{TM}, v{TM+2*k}"); I(f"v_add_f32 v{TM+1}, v{TM+1}, v{TM+2*k+1}")
    for k in range(2): I(f"v_bfi_b32 v{TM+k}, 1, v{NOo+k}, v{TM+k}")
    if not dbg & 1024: I(f"buffer_store_dwordx2 {vr(TM, 2)}, v{vSt}, {sr(rW)}, s{sOS} offen {stflags}")
    hstamp(16)
    if npoll > 1:
        I(f"s_cmp_ge_u32 s{sW}, {npoll}"); I("s_cbranch_scc1 L_hend")
        sn = e.snapshot()
        X0 = 48; X1 = 50
        I(f"s_mov_b64 s[{X0}:{X0+1}], -1"); I(f"s_mov_b64 s[{X1}:{X1+1}], -1")
        for k in range(1, npoll):
            I(f"s_cmp_lt_u32 s{sW}, {k}"); I("s_cbranch_scc1 L_opoll"); I(f"s_sleep {pstag}")
        e.label("L_opoll")
        if oslp: I(f"s_sleep {oslp}")
        e.vmq = []; e.vm_done = 0
        ids = []
        for k in range(2):
            I(f"s_or_b64 exec, s[{(X0, X1)[k]}:{(X0, X1)[k]+1}], 1")
            ids.append(I(f"buffer_load_dwordx4 {vr(GA+8+4*k)}, v{vFo}, {sr(rW)}, s{sFo2 if k else sFo} offen {ldflags}"))
        I("s_mov_b64 exec, -1")
        for k in range(8):
            e.wait_vm(ids[k//4]); I(f"v_alignbit_b32 v{TM}, v{GA+8+k}, v{TM if k else vZ}, 1")
        I(f"v_xor_b32 v{TM}, v{TM}, v{MKo}"); I(f"v_bfe_u32 v{TM+1}, v{TM}, 24, 4"); I(f"v_lshrrev_b32 v{TM}, 28, v{TM}")
        I(f"v_cmp_ne_u32 s[{X0}:{X0+1}], 15, v{TM+1}"); I(f"v_cmp_ne_u32 s[{X1}:{X1+1}], 15, v{TM}")
        for k in range(8): I(f"v_and_b32 v{GA+k}, -2, v{GA+8+k}")
        I(f"s_or_b64 vcc, s[{X0}:{X0+1}], s[{X1}:{X1+1}]")
        if not dbg & (1 + 256): I("s_cbranch_scc1 L_opoll")
        I(f"v_mov_b32 v{TM+1}, 1"); I("s_mov_b64 exec, 1"); I(f"ds_wrxchg_rtn_b32 v{TM}, v{vZ}, v{TM+1} offset:{FL+44}"); I("s_mov_b64 exec, -1")
        for m in range(4): I(f"v_add_f32 v{GA+m}, v{GA+m}, v{GA+4+m}")
    else:
        I(f"s_cmp_lg_u32 s{sW}, 0"); I("s_cbranch_scc1 L_hend")
        sn = e.snapshot()
        e.label("L_opoll")
        if oslp: I(f"s_sleep {oslp}")
        e.vmq = []; e.vm_done = 0
        ids = [I(f"buffer_load_dwordx4 {vr(GA+4*k)}, v{vFo}, {sr(rW)}, s{sFo2 if k else sFo} offen {ldflags}") for k in range(2)]
        for k in range(8):
            e.wait_vm(ids[k//4]); I(f"v_alignbit_b32 v{TM}, v{GA+k}, v{TM if k else vZ}, 1")
        I(f"v_xor_b32 v{TM}, v{TM}, v{MKo}"); I(f"v_cmp_ne_u32 vcc, 0xff000000, v{TM}")
        for k in range(8): I(f"v_and_b32 v{GA+k}, -2, v{GA+k}")
        if not dbg & (1 + 256): I("s_cbranch_vccnz L_opoll")
        for m in range(4): I(f"v_add_f32 v{GA+m}, v{GA+m}, v{GA+4+m}")
    rowsum(GA)
    I(f"v_add_f32_dpp v{GA}, v{GA}, v{GA} row_ror:8 row_mask:0xf bank_mask:0xf")
    I(f"v_cvt_pk_bf16_f32 v{GA}, v{GA}, v{GA}")
    if npoll > 1:
        I("s_waitcnt lgkmcnt(0)"); I(f"v_readfirstlane_b32 s{sPoll}, v{TM}"); I(f"s_cmp_lg_u32 s{sPoll}, 0"); I("s_cbranch_scc1 L_hend"); sn += e.snapshot()
    I("s_mov_b32 exec_lo, 0x00ff00ff"); I("s_mov_b32 exec_hi, 0x00ff00ff")
    I(f"global_store_short v{vOut}, v{GA}, s[{sO}:{sO+1}] {oflags}")
    I("s_mov_b64 exec, -1")
    e.join("L_hend", sn)
    if ts: ts_out(0x600000, 0x700000)
    e.label("L_end"); I("s_endpgm")
    if codepf:
        e.raw(".p2align 8"); e.raw(".fill 3328, 4, 0xbf800000")
    e.raw('.section .rodata,"a"'); e.raw(".p2align 6"); e.raw(f".amdhsa_kernel {KN}")
    e.raw("  .amdhsa_next_free_vgpr 256"); e.raw("  .amdhsa_next_free_sgpr 80"); e.raw("  .amdhsa_accum_offset 256")
    e.raw("  .amdhsa_group_segment_fixed_size 0"); e.raw("  .amdhsa_kernarg_size 64"); e.raw("  .amdhsa_user_sgpr_count 2")
    e.raw("  .amdhsa_user_sgpr_kernarg_segment_ptr 1"); e.raw("  .amdhsa_system_sgpr_workgroup_id_x 1")
    e.raw("  .amdhsa_float_denorm_mode_32 3"); e.raw(".end_amdhsa_kernel")
    return e.text(), e

if __name__ == "__main__":
    import os
    os.makedirs("k", exist_ok=True)
    names = []
    for spec in sys.argv[1:]:
        kw = {}
        for kv in spec.split(","):
            k, v = kv.split("=")
            kw[k] = v.replace("+", " ").replace("none", "") if (k.endswith("flags") or k in ("ms", "lb", "hb")) else int(v)
        fn = "k/v8_" + spec.replace(",", "_").replace("=", "").replace("+", "") + ".s"
        txt, e = gen(**kw)
        open(fn, "w").write(txt); names.append("work/" + fn)
        print(fn, "nops", e.nnops, "lines", len(e.out), file=sys.stderr)
    print(" ".join(names))
```
